```python
import torch

def _softmax(x, axis=-1):
    return torch.softmax(x, dim=axis)
def _gelu(x):
    return torch.nn.functional.gelu(x, approximate="tanh")
def _silu(x):
    return torch.nn.functional.silu(x)
def _sigmoid(x):
    return torch.sigmoid(x)
def _layernorm(x, axis=-1, eps=1e-5):
    m = x.mean(dim=axis, keepdim=True)
    v = x.var(dim=axis, keepdim=True, unbiased=False)
    return (x - m) / torch.sqrt(v + eps)
def _scatter_add(tgt, idx, src, axis=0):
    return tgt.clone().index_add_(axis, idx, src)
def _segment_sum(src, seg, n):
    out = torch.zeros((n,) + src.shape[1:], dtype=src.dtype)
    return out.index_add_(0, seg, src)
def _pad(x, pw):
    flat = tuple(v for pair in reversed(pw) for v in pair)
    return torch.nn.functional.pad(x, flat)

kernel_name = 'gated_mix__ssm_conv_s4__ssm_conv_s4d__prompt'

def setup_inputs():

    _w = (lambda a: (lambda t: t.to(torch.bfloat16) if t.is_floating_point() else t)(torch.as_tensor(a)))
    def _A_setup():
        B, L, D, N = 1, 2048, 640, 192
        A_re = -(lambda _x: torch.exp(torch.as_tensor(_x)))((lambda *s: torch.randn(*s, dtype=torch.bfloat16) * 6.4)(D, N))
        A_im = torch.pi * (lambda *s: torch.randn(*s, dtype=torch.bfloat16) * 0.05)(D, N)
        B_re = (lambda *s: torch.randn(*s, dtype=torch.bfloat16) * 0.05)(D, N)
        B_im = (lambda *s: torch.randn(*s, dtype=torch.bfloat16) * 0.05)(D, N)
        C_re = (lambda *s: torch.randn(*s, dtype=torch.bfloat16) * 0.05)(D, N)
        C_im = (lambda *s: torch.randn(*s, dtype=torch.bfloat16) * 0.05)(D, N)
        log_dt = (lambda *s: torch.randn(*s, dtype=torch.bfloat16) * 0.05)(D) * 0.5 - 4.0
        Dskip = (lambda *s: torch.randn(*s, dtype=torch.bfloat16) * 0.05)(D)
        return {
            "u": _w((lambda *s: torch.randn(*s, dtype=torch.bfloat16) * 0.05)(B, L, D)),
            "A_re": _w(A_re),
            "A_im": _w(A_im),
            "B_re": _w(B_re),
            "B_im": _w(B_im),
            "C_re": _w(C_re),
            "C_im": _w(C_im),
            "log_dt": _w(log_dt),
            "Dskip": _w(Dskip),
        }
    _A_in = _A_setup()

    def _B_setup():
        Bsz, L, D, N = 1, 2048, 640, 192
        return {
            "u": _w((lambda *s: torch.randn(*s, dtype=torch.bfloat16) * 0.05)(Bsz, L, D)),
            "log_A_real": _w((lambda *s: torch.randn(*s, dtype=torch.bfloat16) * 6.4)(D, N) * 0.5),
            "A_imag": _w((lambda *s: torch.randn(*s, dtype=torch.bfloat16) * 0.05)(D, N) * 3.14),
            "C_real": _w((lambda *s: torch.randn(*s, dtype=torch.bfloat16) * 0.05)(D, N) / N ** 0.5),
            "C_imag": _w((lambda *s: torch.randn(*s, dtype=torch.bfloat16) * 0.05)(D, N) / N ** 0.5),
            "log_dt": _w((lambda *s: torch.randn(*s, dtype=torch.bfloat16) * 0.05)(D) * 0.5 - 4.0),
            "D_skip": _w((lambda *s: torch.randn(*s, dtype=torch.bfloat16) * 0.05)(D)),
        }
    _B_in = _B_setup()

    return {
        "A_u": _A_in["u"],
        "A_A_re": _A_in["A_re"],
        "A_A_im": _A_in["A_im"],
        "A_B_re": _A_in["B_re"],
        "A_B_im": _A_in["B_im"],
        "A_C_re": _A_in["C_re"],
        "A_C_im": _A_in["C_im"],
        "A_log_dt": _A_in["log_dt"],
        "A_Dskip": _A_in["Dskip"],
        "B_u": _B_in["u"],
        "B_log_A_real": _B_in["log_A_real"],
        "B_A_imag": _B_in["A_imag"],
        "B_C_real": _B_in["C_real"],
        "B_C_imag": _B_in["C_imag"],
        "B_log_dt": _B_in["log_dt"],
        "B_D_skip": _B_in["D_skip"],
        "gate_w": _w((lambda *s: torch.randn(*s, dtype=torch.bfloat16) * 0.05)(640) * 16.0),
    }

def reference(A_u, A_A_re, A_A_im, A_B_re, A_B_im, A_C_re, A_C_im, A_log_dt, A_Dskip, B_u, B_log_A_real, B_A_imag, B_C_real, B_C_imag, B_log_dt, B_D_skip, gate_w):
    def _A_ref(u, A_re, A_im, B_re, B_im, C_re, C_im, log_dt, Dskip):
        Bsz, L, D = u.shape
        dt = torch.exp(log_dt)[:, None]
        A = A_re + 1j * A_im
        Bc = B_re + 1j * B_im
        Cc = C_re + 1j * C_im
        logdA = dt * A
        dB = dt * Bc
        l = (lambda x, dt: x.to(dt))(torch.arange(L), A_re.dtype)
        P = torch.exp(logdA[:, :, None] * l[None, None, :])
        K = torch.einsum("dn,dnl,dn->dl", Cc, P, dB).real
        L2 = 2 * L
        Kp = _pad(K, ((0, 0), (0, L)))
        up = (lambda x, *d: x.permute(*d))(u, 0, 2, 1)
        up = _pad(up, ((0, 0), (0, 0), (0, L)))
        Kf = (lambda x, axes=(-2,-1): torch.fft.rfft2(x.float(), dim=axes))(Kp[:, None, :], axes=(-2, -1))
        Uf = (lambda x, axes=(-2,-1): torch.fft.rfft2(x.float(), dim=axes))(up[:, :, None, :], axes=(-2, -1))
        Yf = Uf * Kf[None, :, :, :]
        y = (lambda x, s, axes=(-2,-1): torch.fft.irfft2(x, s=s, dim=axes).to(torch.bfloat16))(Yf, (1, L2), axes=(-2, -1))[:, :, 0, :L]
        y = (lambda x, *d: x.permute(*d))(y, 0, 2, 1) + u * Dskip[None, None, :]
        return y

    def _B_ref(u, log_A_real, A_imag, C_real, C_imag, log_dt, D_skip):
        L = u.shape[1]
        dt = torch.exp(log_dt)
        A = -torch.exp(log_A_real) + 1j * A_imag
        C = (C_real + 1j * C_imag) * dt[:, None]
        pos = (lambda x, dt: x.to(dt))(torch.arange(L), log_dt.dtype)
        P = torch.exp((A * dt[:, None])[:, :, None] * pos[None, None, :])
        K = 2.0 * torch.einsum("dn,dnl->dl", C, P).real
        L2 = 2 * L
        u_t = (lambda x, *d: x.permute(*d))(u, 0, 2, 1)
        Kf = (lambda x, *a, **k: torch.fft.rfft(x.float(), *a, **k))(K, L2)
        Uf = (lambda x, *a, **k: torch.fft.rfft(x.float(), *a, **k))(u_t, L2)
        y = (lambda x, *a, **k: torch.fft.irfft(x, *a, **k).to(torch.bfloat16))(Uf * Kf[None, :, :], L2)[:, :, :L]
        y = (lambda x, *d: x.permute(*d))(y, 0, 2, 1)
        return y + u * D_skip[None, None, :]

    x = A_u
    g = _sigmoid((x * gate_w).sum(-1, keepdims=True))
    a = _A_ref(x, A_A_re, A_A_im, A_B_re, A_B_im, A_C_re, A_C_im, A_log_dt, A_Dskip)
    b = _B_ref(x, B_log_A_real, B_A_imag, B_C_real, B_C_imag, B_log_dt, B_D_skip)
    return g * a + (1 - g) * b
```

```python
import re
def regs_of(tok):
    tok = tok.strip()
    tok = re.sub(r'^-|^abs\(|^\||\)$|\|$', '', tok)
    tok = re.sub(r'^abs\(|^\|', '', tok)
    m = re.fullmatch(r'([vs])(\d+)', tok)
    if m: return [(m.group(1), int(m.group(2)))]
    m = re.fullmatch(r'([vs])\[(\d+):(\d+)\]', tok)
    if m: return [(m.group(1), i) for i in range(int(m.group(2)), int(m.group(3))+1)]
    if tok == 'vcc': return [('s',106),('s',107)]
    if tok == 'exec': return [('s',126),('s',127)]
    if tok == 'm0': return [('s',124)]
    return []
TRANS = ('v_exp_f32','v_log_f32','v_rcp_f32','v_rsq_f32','v_sqrt_f32','v_sin_f32','v_cos_f32')
class Ins:
    def __init__(s, text):
        s.text = text
        t = text.split(';')[0].strip()
        p = t.split(None, 1)
        s.op = p[0]
        rest = p[1] if len(p) > 1 else ''
        ops = [x.strip() for x in re.split(r',(?![^\[]*\])', rest)] if rest else []
        if ops:
            last = ops[-1].split()
            s.mods = ' '.join(last[1:]); ops[-1] = last[0] if last else ''
        else: s.mods = ''
        s.ops = ops
        op = s.op
        s.mfma = op.startswith('v_mfma')
        s.valu = op.startswith('v_') and not s.mfma
        s.ds = op.startswith('ds_')
        s.vmem = op.startswith(('buffer_','global_'))
        s.salu = op.startswith('s_')
        s.smem = op.startswith(('s_load','s_memtime','s_memrealtime','s_buffer_load'))
        s.trans = op.startswith(TRANS)
        s.dpp = ('_dpp' in op) or ('row_' in s.mods) or ('quad_perm' in s.mods) or ('wave_' in s.mods)
        R = [regs_of(o) for o in ops]
        w, r = [], []
        store = ('store' in op) or op.startswith('ds_write') or op.startswith(('s_cmp','s_cbranch','s_branch','s_waitcnt','s_nop','s_barrier','s_endpgm','s_setprio','s_sleep','s_bitcmp'))
        if store:
            for x in R: r += x
        else:
            if R: w += R[0]
            for x in R[1:]: r += x
            if op.startswith(('v_fmac','v_pk_fmac','v_dot2c')) or 'd16' in op or s.dpp or op.startswith('v_writelane'): r += R[0]
            if op.startswith(('v_add_co','v_sub_co','v_addc_co')): w += R[1]
            if op.startswith('v_permlane') and 'swap' in op: w += R[1]; r += R[0]
            if op.endswith('saveexec_b64'): w += [('s',126),('s',127)]
        if op.startswith('v_cmp') and ops[0] == 'vcc': pass
        if op.startswith('v_cndmask') and len(ops) == 3: r += [('s',106),('s',107)]
        if 'addtid' in op: r += [('s',124)]
        s.w, s.r = set(w), set(r)
        if s.mfma:
            s.srcc = set(R[3]); s.srcab = set(R[1]+R[2])
class Emitter:
    def __init__(s):
        s.lines = []; s.hist = []
        s.lg = []; s.vm = []
        s.count = 0
    def raw(s, t): s.lines.append(t)
    def comment(s, t): s.lines.append('    ; ' + t)
    def label(s, name):
        s.lines.append(name + ':'); s.barrier_state()
    def barrier_state(s):
        s.hist_unknown = True
    def reset(s):
        s.hist = []; s.lg = []; s.vm = []
    def _need(s, i):
        need = 0; d = 0
        for (p, st) in reversed(s.hist):
            if d >= 20: break
            req = 0
            pv = {x for x in p.w if x[0]=='v'}; ps = {x for x in p.w if x[0]=='s'}
            if p.mfma:
                if i.mfma:
                    if pv & i.srcab: req = 8
                    elif (pv & i.srcc) and pv != i.srcc: req = 6
                    elif (pv & i.w) and pv != i.srcc: req = 6
                elif (i.valu or i.ds or i.vmem) and (pv & (i.r | i.w)): req = 8
                if i.valu and (p.srcc & i.w): req = max(req, 3)
            if p.valu:
                if i.mfma and (pv & i.r): req = max(req, 2)
                if p.trans and i.valu and not i.trans and (pv & i.r): req = max(req, 1)
                if p.trans and (i.ds or i.vmem) and (pv & i.r): req = max(req, 1)
                if i.dpp and (pv & i.r): req = max(req, 2)
                if i.op.startswith(('v_readlane','v_readfirstlane')) and (pv & i.r): req = max(req, 1)
                if i.op.startswith('v_permlane') and (pv & i.r): req = max(req, 2)
                if ps:
                    if i.valu and (ps & i.r): req = max(req, 2)
                    if i.op.startswith(('v_readlane','v_writelane')) and (ps & i.r): req = max(req, 4)
                    if i.vmem and (ps & i.r): req = max(req, 5)
                    if i.salu and (ps & i.r): req = max(req, 1)
                if p.op.startswith('v_dot') and (pv & (i.r|i.w)) and not (i.op == p.op and (pv & i.r) and regs_of(i.ops[-1]) and set(regs_of(i.ops[3] if len(i.ops)>3 else i.ops[0])) == pv and not (pv & set(regs_of(i.ops[1])+regs_of(i.ops[2])))): req = max(req, 3)
                if ('op_sel' in p.mods and not p.op.startswith('v_pk')) and i.valu and (pv & (i.r|i.w)): req = max(req, 1)
            if p.salu and ('s',124) in p.w and ('s',124) in i.r: req = max(req, 1)
            if p.salu and (('s',126) in p.w or ('s',127) in p.w) and i.dpp: req = max(req, 0)
            if p.vmem and 'store' in p.op and ('x4' in p.op or 'x3' in p.op) and i.valu and (p.r & i.w): req = max(req, 2)
            need = max(need, req - d)
            d += st
        return need
    def _push(s, i, st=1):
        s.hist.append((i, st)); s.lines.append('    ' + i.text); s.count += 1
        if len(s.hist) > 40: s.hist = s.hist[-30:]
    def wait(s, lg=None, vm=None):
        parts = []
        if vm is not None: parts.append(f'vmcnt({vm})'); s.vm = s.vm[len(s.vm)-vm:] if vm else []
        if lg is not None: parts.append(f'lgkmcnt({lg})'); s.lg = s.lg[len(s.lg)-lg:] if lg else []
        s._push(Ins('s_waitcnt ' + ' '.join(parts)))
    def _autowait(s, i):
        touched = i.r | i.w
        lg = None; vm = None
        for k, regs in enumerate(s.lg):
            if regs == 'smem':
                continue
            if regs & touched: lg = len(s.lg) - 1 - k
        if lg is not None and any(x == 'smem' for x in s.lg): lg = 0
        for k, regs in enumerate(s.vm):
            if regs & touched: vm = len(s.vm) - 1 - k
        if lg is not None and lg > 14:
            lg = 14
        if lg is not None or vm is not None: s.wait(lg, vm)
    def __call__(s, text, nowait=False):
        i = Ins(text)
        if not nowait: s._autowait(i)
        n = s._need(i)
        while n > 0:
            k = min(n, 16)
            s._push(Ins(f's_nop {k-1}'), k); n -= k
        st = 1
        if i.op == 's_nop': st = int(i.ops[0]) + 1
        s._push(i, st)
        if i.ds: s.lg.append(set(i.w))
        if i.vmem: s.vm.append(set(i.w))
        if i.smem: s.lg.append('smem')
        return i
    def text(s): return '\n'.join(s.lines) + '\n'
def v(a, n=1): return f'v{a}' if n == 1 else f'v[{a}:{a+n-1}]'
def sr(a, n=1): return f's{a}' if n == 1 else f's[{a}:{a+n-1}]'
```

```python
import sys, os
sys.path.insert(0, os.path.dirname(os.path.abspath(__file__)))
from asmlib import *

NAME = 'gated_mix__ssm_conv_s4__ssm_conv_s4d__prompt_kernel'
STAMP = int(os.environ.get('STAMP', '0'))
DUMP = int(os.environ.get('DUMP', '0'))

RS = 288
TABS = 17*RS
L_TAB = 0
L_U = 8*TABS
US = 4608
L_KC = L_U + 3*US
CS = 1984
KS = 4*CS
FARB = 1216
L_OS = L_KC + 6*KS
OSS = 4160
L_GT = L_OS + 12544
L_FL = L_GT + 8192
LDS_BYTES = L_FL + 64
L_FP = 0
F_FAR = L_FL
F_OUT = L_FL + 16
F_Z = L_FL + 32
N0 = 575
GPOS = [47, 95, 143, 191, 271, 351]
WS_G = 0
WS_EPOCH = 8192 + 256
WS_STAMP = 1 << 20
WS_DUMP = 2 << 20

P_U, P_ARE, P_AIM, P_BRE, P_BIM, P_CRE, P_CIM, P_ALDT = 4, 6, 8, 10, 12, 14, 16, 18
P_AD, P_BU, P_2RE, P_2IM, P_2CRE, P_2CIM, P_2LDT, P_2D = 20, 22, 24, 26, 28, 30, 32, 34
P_GW, P_OUT, P_DBG, P_WS = 36, 38, 40, 42
S_W = 3; S_XCD = 44; S_IDX = 45; S_Q = 46; S_D0 = 47; S_T0 = 48; S_T1 = 49; S_T2 = 50; S_T3 = 51
S_TYPB = 52; S_NP = 53; S_Z = 54; S_TAG = 55; S_SCL = 56; S_INV = 57; S_UNIT = 58; S_L0 = 59; S_L1 = 60
S_PSEL = 61; S_SEL = 62; S_NEWDT = 63
S_SRD = 64
S_EX = 68
S_PC = 70
S_H = 72; S_OFF = 73; S_ZI = 74; S_SPIN = 75; S_LIGHT = 100
SPIN = 1 << 18
S_ST = 76

e = Emitter()
nstamp = [0]
def stamp(k):
    if STAMP:
        e(f's_memrealtime {sr(S_ST+2*k,2)}')
        e.lg.pop()
        e.wait(lg=0)

def spin():
    e(f's_sub_u32 s{S_SPIN}, s{S_SPIN}, 1')
    e(f's_cbranch_scc1 L_giveup')

V_LANE = 0
V_T = 1
V_RE = 10
V_IM = 13
V_C = 16
V_B = 22
V_LDT = 28
V_DSK = 30
V_Q0 = 31
V_DT, V_DTL, V_DTR = 34, 35, 36
V_W = 38
V_RA1, V_RA2, V_RAQ = 42, 43, 44
V_KW1, V_KW3, V_KWS = 45, 46, 47
V_UL = 48
V_UA = 56
V_ACC = 60
V_QF = 72
V_TF = 88
V_P = 136
V_BAND = 248
V_GX = 136
V_BADDR = 244; V_AADDR = 245; V_KADDR = 246; V_L16 = 247

def build():
    e.raw(f'{NAME}:')
    e(f's_load_dwordx16 s[4:19], s[0:1], 0')
    e(f's_load_dwordx16 s[20:35], s[0:1], 64')
    e(f's_load_dwordx8 s[36:43], s[0:1], 128')
    if STAMP: e(f's_memrealtime {sr(S_ST,2)}')
    e(f's_cmp_ge_u32 s2, 256')
    e(f's_cbranch_scc1 L_end')
    e(f'v_lshrrev_b32 v1, 6, v0')
    e(f'v_and_b32 v0, 63, v0')
    e(f'v_readfirstlane_b32 s{S_W}, v1')
    e(f's_and_b32 s{S_XCD}, s2, 7')
    e(f's_lshr_b32 s{S_IDX}, s2, 3')
    e(f's_sub_u32 s{S_Q}, s{S_IDX}, 4')
    e(f's_cbranch_scc1 L_light')
    e(f's_mul_i32 s{S_T0}, s{S_Q}, 187')
    e(f's_lshr_b32 s{S_T0}, s{S_T0}, 11')
    e(f's_mul_i32 s{S_T1}, s{S_T0}, 11')
    e(f's_sub_u32 s{S_T1}, s{S_Q}, s{S_T1}')
    e(f's_mul_i32 s{S_T1}, s{S_T1}, 3')
    e(f's_min_u32 s{S_T1}, s{S_T1}, 29')
    e(f's_lshl_b32 s{S_T0}, s{S_T0}, 5')
    e(f's_add_u32 s{S_T1}, s{S_T1}, s{S_T0}')
    e(f's_min_u32 s{S_T1}, s{S_T1}, 77')
    e(f's_sub_u32 s{S_T0}, 77, s{S_T1}')
    e(f's_bitcmp1_b32 s{S_XCD}, 0')
    e(f's_cselect_b32 s{S_T1}, s{S_T0}, s{S_T1}')
    e(f's_mul_i32 s{S_D0}, s{S_XCD}, 80')
    e(f's_add_u32 s{S_D0}, s{S_D0}, s{S_T1}')
    e(f's_lshl_b32 s{S_T0}, s{S_W}, 2')
    e(f's_lshr_b32 s{S_L0}, 0x56302630, s{S_T0}')
    e(f's_and_b32 s{S_L0}, s{S_L0}, 15')
    e(f's_lshr_b32 s{S_L1}, 0x87418741, s{S_T0}')
    e(f's_and_b32 s{S_L1}, s{S_L1}, 15')
    e(f's_mul_i32 s{S_T1}, s{S_D0}, 3')
    e(f's_add_u32 s{S_T2}, s{S_T1}, s{S_L0}')
    e(f's_add_u32 s{S_T3}, s{S_T1}, s{S_L1}')
    e(f's_lshl_b32 s{S_T2}, s{S_T2}, 7')
    e(f's_lshl_b32 s{S_T3}, s{S_T3}, 7')
    e(f'v_lshl_add_u32 v1, v0, 1, s{S_T2}')
    e(f'v_lshl_add_u32 v2, v0, 1, s{S_T3}')
    e(f's_lshr_b32 s{S_T2}, 0x12100210, s{S_T0}')
    e(f's_and_b32 s{S_T2}, s{S_T2}, 15')
    e(f's_lshr_b32 s{S_T3}, 0x22102210, s{S_T0}')
    e(f's_and_b32 s{S_T3}, s{S_T3}, 15')
    e(f's_lshr_b32 s{S_TYPB}, 0xD2, s{S_W}')
    e(f's_and_b32 s{S_TYPB}, s{S_TYPB}, 1')
    e(f's_lshl1_add_u32 s{S_UNIT}, s{S_T2}, s{S_TYPB}')
    e(f's_add_u32 s{S_T2}, s{S_T2}, s{S_D0}')
    e(f's_add_u32 s{S_T3}, s{S_T3}, s{S_D0}')
    e(f's_lshl_b32 s{S_T2}, s{S_T2}, 1')
    e(f's_lshl_b32 s{S_T3}, s{S_T3}, 1')
    e(f'v_mov_b32 v3, s{S_T2}')
    e(f'v_mov_b32 v4, s{S_T3}')
    for r in range(V_RE, V_DSK+1): e(f'v_mov_b32 v{r}, 0')
    e(f's_cmp_eq_u32 s{S_TYPB}, 1')
    e.wait(lg=0)
    e(f's_cselect_b64 {sr(P_ARE,2)}, {sr(P_2RE,2)}, {sr(P_ARE,2)}')
    e(f's_cselect_b64 {sr(P_AIM,2)}, {sr(P_2IM,2)}, {sr(P_AIM,2)}')
    e(f's_cselect_b64 {sr(P_CRE,2)}, {sr(P_2CRE,2)}, {sr(P_CRE,2)}')
    e(f's_cselect_b64 {sr(P_CIM,2)}, {sr(P_2CIM,2)}, {sr(P_CIM,2)}')
    e(f's_cselect_b64 {sr(P_ALDT,2)}, {sr(P_2LDT,2)}, {sr(P_ALDT,2)}')
    e(f's_cselect_b64 {sr(P_AD,2)}, {sr(P_2D,2)}, {sr(P_AD,2)}')
    LD = 'global_load_short_d16_hi'
    for p in range(2):
        e(f'{LD} v{V_C+2*p}, v{1+p}, {sr(P_CRE,2)}')
        e(f'{LD} v{V_C+2*p+1}, v{1+p}, {sr(P_CIM,2)}')
    e(f's_cbranch_scc1 L_ldB')
    for p in range(2):
        e(f'{LD} v{V_B+2*p}, v{1+p}, {sr(P_BRE,2)}')
        e(f'{LD} v{V_B+2*p+1}, v{1+p}, {sr(P_BIM,2)}')
    e.label('L_ldB')
    for p in range(2):
        e(f'{LD} v{V_LDT+p}, v{3+p}, {sr(P_ALDT,2)}')
        e(f'{LD} v{V_RE+p}, v{1+p}, {sr(P_ARE,2)}')
        e(f'{LD} v{V_IM+p}, v{1+p}, {sr(P_AIM,2)}')
    e(f'{LD} v{V_DSK}, v3, {sr(P_AD,2)}')
    e(f's_and_b32 s{S_T0}, s{S_W}, 6')
    e(f's_mov_b32 s{S_NP}, 2')
    e(f's_cmp_eq_u32 s{S_T0}, 4')
    e(f's_cbranch_scc0 L_ld3')
    e(f's_mov_b32 s{S_NP}, 3')
    e(f'{LD} v{V_C+4}, v1, {sr(P_CRE,2)} offset:256')
    e(f'{LD} v{V_C+5}, v1, {sr(P_CIM,2)} offset:256')
    e(f'{LD} v{V_B+4}, v1, {sr(P_BRE,2)} offset:256')
    e(f'{LD} v{V_B+5}, v1, {sr(P_BIM,2)} offset:256')
    e(f'{LD} v{V_RE+2}, v1, {sr(P_ARE,2)} offset:256')
    e(f'{LD} v{V_IM+2}, v1, {sr(P_AIM,2)} offset:256')
    e.label('L_ld3')
    e.reset()
    e(f's_mov_b32 s{S_LIGHT}, 0')
    e(f's_branch L_common')
    e.label('L_light')
    e(f's_mov_b32 s{S_LIGHT}, 1')
    e.wait(lg=0)
    e.label('L_common')
    e.reset()
    e(f's_cmp_gt_u32 s{S_W}, 3')
    e(f's_cbranch_scc1 L_nopf')
    e(f's_cmp_eq_u32 s{S_W}, 0')
    e(f's_cbranch_scc0 L_upf')
    e(f's_getpc_b64 {sr(S_PC,2)}')
    e.raw('L_pc:')
    e(f's_lshl_b32 s{S_T0}, s{S_IDX}, 9')
    e(f'v_lshl_add_u32 v5, v0, 3, s{S_T0}')
    e(f'v_min_u32 v5, (L_codeend-L_pc-8)&0xfffffff8, v5')
    e(f'global_load_dwordx2 v[58:59], v5, {sr(S_PC,2)}')
    e(f's_branch L_nopf')
    e.label('L_upf')
    e(f's_cmp_eq_u32 s{S_W}, 3')
    e(f's_cbranch_scc1 L_nopf')
    e(f's_lshl_b32 s{S_T0}, s{S_IDX}, 1')
    e(f's_add_u32 s{S_T0}, s{S_T0}, s{S_W}')
    e(f's_sub_u32 s{S_T0}, s{S_T0}, 1')
    e(f's_mul_i32 s{S_T0}, s{S_T0}, {32*1280}')
    e(f's_mul_i32 s{S_T1}, s{S_XCD}, 160')
    e(f's_add_u32 s{S_T0}, s{S_T0}, s{S_T1}')
    e(f'v_lshrrev_b32 v5, 1, v0')
    e(f'v_mul_u32_u24 v5, 1280, v5')
    e(f'v_and_b32 v6, 1, v0')
    e(f'v_mul_u32_u24 v6, 156, v6')
    e(f'v_add3_u32 v5, v5, v6, s{S_T0}')
    e(f'global_load_dword v58, v5, {sr(P_U,2)}')
    e.label('L_nopf')
    e.reset()
    e(f's_cmp_eq_u32 s{S_W}, 6')
    e(f's_cbranch_scc0 L_nogld')
    e(f's_load_dword s{S_TAG}, {sr(P_WS,2)}, {WS_EPOCH}')
    e(f's_and_b32 s{S_T0}, s2, 15')
    e(f's_bfe_u32 s{S_T1}, s2, 0x20004')
    e(f's_lshr_b32 s{S_T2}, s2, 6')
    e(f's_lshl_b32 s{S_T1}, s{S_T1}, 6')
    e(f's_lshl_b32 s{S_T2}, s{S_T2}, 9')
    e(f's_add_u32 s{S_T0}, s{S_T0}, s{S_T1}')
    e(f's_add_u32 s{S_T0}, s{S_T0}, s{S_T2}')
    e(f'v_lshrrev_b32 v5, 5, v0')
    e(f'v_lshlrev_b32 v5, 8, v5')
    e(f'v_bfe_u32 v6, v0, 3, 2')
    e(f'v_lshl_add_u32 v5, v6, 4, v5')
    e(f'v_add_u32 v5, s{S_T0}, v5')
    e(f'v_mul_u32_u24 v5, 1280, v5')
    e(f'v_and_b32 v6, 7, v0')
    e(f'v_lshlrev_b32 v6, 4, v6')
    e(f'v_add_u32 v5, v5, v6')
    for k in range(10):
        e(f'global_load_dwordx4 {v(V_GX+4*k,4)}, v5, {sr(P_U,2)} offset:{128*k}')
        e(f'global_load_dwordx4 {v(V_GX+40+4*k,4)}, v6, {sr(P_GW,2)} offset:{128*k}')
    e.label('L_nogld')
    e.reset()
    e(f's_cmp_eq_u32 s{S_LIGHT}, 1')
    e(f's_cbranch_scc0 L_init')
    e(f's_cmp_eq_u32 s{S_W}, 6')
    e(f's_cbranch_scc1 L_gate')
    e(f's_endpgm')
    e.label('L_init')
    e.reset()
    e(f's_and_b32 s{S_SEL}, s{S_D0}, 1')
    e(f's_and_b32 s{S_T0}, s{S_D0}, 0xfffe')
    e(f's_lshl_b32 s{S_T0}, s{S_T0}, 1')
    e(f's_mul_i32 s{S_T1}, s{S_W}, {128*1280}')
    e(f's_add_u32 s{S_T0}, s{S_T0}, s{S_T1}')
    e(f'v_mul_u32_u24 v{V_UA}, 2560, v0')
    e(f'v_add_u32 v{V_UA}, s{S_T0}, v{V_UA}')
    e(f'global_load_dwordx2 {v(V_UL,2)}, v{V_UA}, {sr(P_U,2)}')
    e(f's_mul_i32 s{S_T0}, s{S_W}, 7680')
    e(f's_mov_b32 m0, s{S_T0}')
    e(f'v_mov_b32 v5, 0')
    for k in range(30): e(f'ds_write_addtid_b32 v5 offset:{L_U+256*k}')
    e(f's_mul_i32 s{S_T0}, s{S_W}, {TABS}')
    e(f's_mov_b32 m0, s{S_T0}')
    e(f'v_mov_b32 v5, 0x3c00')
    e(f'ds_write_addtid_b32 v5 offset:{16*RS}')
    e(f'v_cmp_gt_u32 vcc, 2, v0')
    e(f'v_cndmask_b32 v5, 0, 2, vcc')
    e(f'v_and_b32 v6, 15, v0')
    e(f'v_lshlrev_b32 v7, 2, v6')
    e(f'v_add_u32 v7, {L_FL}, v7')
    e(f'v_cmp_gt_u32 vcc, 16, v0')
    e(f's_and_saveexec_b64 {sr(S_EX,2)}, vcc')
    e(f'ds_write_b32 v7, v5')
    e(f's_mov_b64 exec, {sr(S_EX,2)}')
    e(f'v_lshrrev_b32 v7, 4, v0')
    e(f'v_lshl_add_u32 v8, v7, 4, s{S_T0}')
    e(f'v_mul_u32_u24 v9, {RS}, v6')
    e(f'v_add_u32 v{V_RAQ}, v8, v9')
    e(f'v_cmp_eq_u32 vcc, 0, v6')
    e(f'v_mov_b32 v5, {16*RS}')
    e(f'v_cndmask_b32 v9, v9, v5, vcc')
    e(f'v_add_u32 v{V_RA1}, v8, v9')
    e(f'v_and_b32 v5, 3, v6')
    e(f'v_sub_u32 v5, v5, 1 clamp')
    e(f'v_lshrrev_b32 v9, 2, v6')
    e(f'v_lshl_add_u32 v5, v9, 1, v5')
    e(f'v_mul_u32_u24 v5, {RS}, v5')
    e(f'v_add_u32 v{V_RA2}, v8, v5')
    e(f's_mul_i32 s{S_T1}, s{S_UNIT}, {KS}')
    e(f's_add_u32 s{S_T1}, s{S_T1}, {L_KC}')
    e(f'v_lshlrev_b32 v5, 5, v6')
    e(f'v_lshl_add_u32 v5, v7, 3, v5')
    e(f's_add_u32 s{S_T2}, s{S_T1}, {2*(N0-3-256)}')
    e(f'v_sub_u32 v{V_KW1}, s{S_T2}, v5')
    e(f'v_and_b32 v5, 3, v6')
    e(f'v_mul_u32_u24 v5, 96, v5')
    e(f'v_lshlrev_b32 v8, 5, v9')
    e(f'v_sub_u32 v5, v5, v8')
    e(f'v_add_u32 v5, {2*44}, v5')
    e(f'v_and_b32 v8, 1, v6')
    e(f'v_mul_u32_u24 v8, 160, v8')
    e(f'v_bfe_u32 v9, v6, 1, 2')
    e(f'v_lshlrev_b32 v9, 5, v9')
    e(f'v_sub_u32 v8, v8, v9')
    e(f'v_add_u32 v8, {2*268}, v8')
    e(f'v_cmp_gt_u32 vcc, 8, v6')
    e(f'v_cndmask_b32 v5, v8, v5, vcc')
    e(f'v_lshlrev_b32 v8, 3, v7')
    e(f'v_sub_u32 v5, v5, v8')
    e(f's_add_u32 s{S_T2}, s{S_T1}, {FARB}')
    e(f'v_add_u32 v{V_KW3}, s{S_T2}, v5')
    e(f'v_and_b32 v5, 3, v0')
    e(f'v_mul_u32_u24 v5, {CS+2}, v5')
    e(f'v_lshrrev_b32 v8, 2, v0')
    e(f'v_cmp_lt_u32 vcc, 2, v8')
    e(f'v_cndmask_b32 v9, 0, 32, vcc')
    e(f'v_add_u32 v8, v8, v9')
    e(f'v_lshlrev_b32 v8, 1, v8')
    e(f'v_sub_u32 v5, v5, v8')
    e(f's_add_u32 s{S_T2}, s{S_T1}, {2*(N0-512)}')
    e(f'v_add_u32 v{V_KWS}, s{S_T2}, v5')
    e(f'v_add_u32 v5, 1, v6')
    e(f'v_and_b32 v5, 3, v5')
    e(f'v_mul_u32_u24 v5, {CS+2}, v5')
    e(f'v_lshlrev_b32 v8, 1, v6')
    e(f'v_sub_u32 v5, v5, v8')
    e(f'v_lshl_add_u32 v{V_BADDR}, v7, 4, v5')
    e(f'v_lshl_add_u32 v{V_KADDR}, v7, 3, v5')
    e(f'v_lshlrev_b32 v5, 5, v6')
    e(f'v_lshl_add_u32 v{V_AADDR}, v7, 4, v5')
    e(f'v_lshlrev_b32 v{V_L16}, 4, v0')
    e(f's_and_b32 s{S_T0}, s{S_W}, 3')
    e(f's_cmp_eq_u32 s{S_T0}, 3')
    e(f's_cselect_b32 s{S_Z}, 1, 0')
    e(f's_cselect_b32 s{S_T0}, 7, 127')
    e(f's_cselect_b32 s{S_T1}, {32+12-1}, {32+8-3}')
    e(f's_cselect_b32 s{S_T2}, 31, 511')
    e(f's_cselect_b32 s{S_T3}, {32+8-2}, {32+8-4}')
    e(f'v_lshlrev_b32 v5, 3, v7')
    e(f'v_sub_u32 v5, v6, v5')
    for b, (sp, so) in enumerate(((S_T0, S_T1), (S_T2, S_T3))):
        e(f'v_mov_b32 v8, s{sp}')
        e(f'v_mov_b32 v9, 0')
        e(f'v_add_u32 v1, s{so}, v5')
        e(f'v_lshlrev_b64 v[8:9], v1, v[8:9]')
        e(f'v_and_b32 v9, 0xff, v9')
        e(f'v_lshl_or_b32 v9, v9, 15, v9')
        for i in range(4):
            if i: e(f'v_lshrrev_b32 v9, 2, v9')
            e(f'v_and_b32 v8, 0x10001, v9')
            e(f'v_mul_u32_u24 v{V_BAND+4*b+i}, 0x3f80, v8')
    for r in range(12): e(f'v_mov_b32 v{V_ACC+r}, 0')
    e(f's_mul_i32 s{S_PSEL}, s{S_SEL}, 0x02020202')
    e(f's_add_u32 s{S_PSEL}, s{S_PSEL}, 0x05040100')
    e(f's_mov_b32 s{S_SPIN}, {SPIN}')
    e(f's_mov_b32 s{S_NEWDT}, 1')
    e(f's_lshr_b32 s{S_ZI}, s{S_W}, 2')
    e(f's_lshl_b32 s{S_ZI}, s{S_ZI}, 1')
    e.wait(lg=0)
    e(f's_barrier')
    stamp(1)
    e(f's_cmp_eq_u32 s{S_W}, 6')
    e(f's_cbranch_scc0 L_kgen')
    e.label('L_gate')
    e.reset()
    e(f's_setprio 3')
    e(f'v_mov_b32 v5, 0')
    e(f'v_mov_b32 v6, 0')
    e.wait(lg=0, vm=1)
    e(f's_cmp_eq_u32 s{S_LIGHT}, 1')
    e(f's_cbranch_scc0 L_g2')
    e.wait(vm=0)
    e.label('L_g2')
    for k in range(40):
        e(f'v_dot2_f32_bf16 v{5+(k&1)}, v{V_GX+k}, v{V_GX+40+k}, v{5+(k&1)}')
    e(f's_add_u32 s{S_TAG}, s{S_TAG}, 0x9E3779B9')
    e(f'v_add_f32 v5, v5, v6')
    for sh in (1, 2, 4):
        e(f'v_add_f32_dpp v5, v5, v5 row_shr:{sh} row_mask:0xf bank_mask:0xf bound_ctrl:0')
    e(f'v_cvt_pk_bf16_f32 v5, v5, v5')
    e(f'v_and_b32 v5, 0xffff0000, v5')
    e(f'v_mul_f32 v5, 0xbfb8aa3b, v5')
    e(f'v_exp_f32 v5, v5')
    e(f'v_add_f32 v5, 1.0, v5')
    e(f'v_rcp_f32 v5, v5')
    e(f'v_mov_b32 v7, s{S_TAG}')
    e(f'v_mov_b32_dpp v6, v5 row_shr:8 row_mask:0xf bank_mask:0xf bound_ctrl:0')
    e(f'v_cvt_pk_bf16_f32 v6, v6, v5')
    e(f's_lshr_b32 s{S_T0}, s2, 6')
    e(f's_lshl_b32 s{S_T0}, s{S_T0}, 11')
    e(f's_and_b32 s{S_T1}, s2, 63')
    e(f's_lshl_b32 s{S_T1}, s{S_T1}, 4')
    e(f's_add_u32 s{S_T0}, s{S_T0}, s{S_T1}')
    e(f'v_lshrrev_b32 v8, 5, v0')
    e(f'v_lshlrev_b32 v8, 10, v8')
    e(f'v_bfe_u32 v9, v0, 4, 1')
    e(f'v_lshl_add_u32 v8, v9, 3, v8')
    e(f'v_add_u32 v8, s{S_T0}, v8')
    e(f's_mov_b32 s{S_T0}, 0x80008000')
    e(f's_mov_b32 exec_lo, s{S_T0}')
    e(f's_mov_b32 exec_hi, s{S_T0}')
    e(f'global_store_dwordx2 v8, v[6:7], {sr(P_WS,2)} sc1')
    e(f's_mov_b64 exec, -1')
    e(f's_setprio 0')
    e(f's_cmp_eq_u32 s{S_LIGHT}, 1')
    e(f's_cbranch_scc1 L_end')
    e(f's_branch L_kgen2')
    e.label('L_kgen')
    e.reset()
    e.wait(vm=1)
    e.label('L_kgen2')
    e.reset()
    stamp(2)
    e(f'global_load_dwordx2 {v(V_UL+2,2)}, v{V_UA}, {sr(P_U,2)} offset:1280')
    e(f's_cmp_eq_u32 s{S_TYPB}, 1')
    e(f's_cbranch_scc1 L_cB')
    for p in range(3):
        c = v(V_C+2*p,2); b = v(V_B+2*p,2)
        e(f'v_pk_mul_f32 {v(V_W,2)}, {c}, {b} op_sel:[0,0] op_sel_hi:[0,1]')
        e(f'v_pk_fma_f32 {c}, {c}, {b}, {v(V_W,2)} op_sel:[1,1,0] op_sel_hi:[1,0,1] neg_lo:[0,1,0]')
    e.label('L_cB')
    e(f'v_max3_f32 v5, |v{V_C}|, |v{V_C+1}|, |v{V_C+2}|')
    e(f'v_max3_f32 v6, |v{V_C+3}|, |v{V_C+4}|, |v{V_C+5}|')
    e(f'v_max_f32 v5, v5, v6')
    for m in ('row_shr:1','row_shr:2','row_shr:4','row_shr:8'):
        e(f'v_max_f32_dpp v5, v5, v5 {m} row_mask:0xf bank_mask:0xf bound_ctrl:0')
    e(f'v_max_f32_dpp v5, v5, v5 row_bcast:15 row_mask:0xa bank_mask:0xf')
    e(f'v_max_f32_dpp v5, v5, v5 row_bcast:31 row_mask:0xc bank_mask:0xf')
    e(f'v_readlane_b32 s{S_SCL}, v5, 63')
    e(f's_lshr_b32 s{S_SCL}, s{S_SCL}, 23')
    e(f's_max_u32 s{S_SCL}, s{S_SCL}, 14')
    e(f's_sub_u32 s{S_INV}, 267, s{S_SCL}')
    e(f's_lshl_b32 s{S_INV}, s{S_INV}, 23')
    e(f's_add_u32 s{S_SCL}, s{S_SCL}, s{S_TYPB}')
    e(f's_sub_u32 s{S_SCL}, s{S_SCL}, 13')
    e(f's_lshl_b32 s{S_SCL}, s{S_SCL}, 23')
    for p in range(3):
        e(f'v_mul_f32 v{V_C+2*p}, s{S_INV}, v{V_C+2*p}')
        e(f'v_mul_f32 v{V_C+2*p+1}, s{S_INV}, v{V_C+2*p+1}')
        e(f'v_cvt_pk_f16_f32 v{V_Q0+p}, v{V_C+2*p}, -v{V_C+2*p+1}')
    e(f's_mul_i32 s{S_T0}, s{S_W}, {TABS}')
    e(f's_mov_b32 m0, s{S_T0}')
    e.label('L_pass')
    e.reset()
    e(f's_cmp_eq_u32 s{S_NEWDT}, 0')
    e(f's_cbranch_scc1 L_nodt')
    e(f'v_mul_f32 v{V_DT}, 0x3fb8aa3b, v{V_LDT}')
    e(f'v_exp_f32 v{V_DT}, v{V_DT}')
    e(f'v_mov_b32 v{V_LDT}, v{V_LDT+1}')
    e(f'v_cvt_pk_bf16_f32 v{V_DT}, v{V_DT}, v{V_DT}')
    e(f'v_and_b32 v{V_DT}, 0xffff0000, v{V_DT}')
    e(f'v_mul_f32 v{V_DTL}, 0x3fb8aa3b, v{V_DT}')
    e(f'v_mul_f32 v{V_DTR}, 0.15915494, v{V_DT}')
    e(f's_mov_b32 s{S_NEWDT}, s{S_Z}')
    e.label('L_nodt')
    e(f's_cmp_eq_u32 s{S_TYPB}, 1')
    e(f's_cbranch_scc0 L_reA')
    e(f'v_mul_f32 v{V_RE}, 0x3fb8aa3b, v{V_RE}')
    e(f'v_exp_f32 v{V_RE}, v{V_RE}')
    e(f'v_cvt_pk_bf16_f32 v{V_RE}, -v{V_RE}, -v{V_RE}')
    e(f'v_and_b32 v{V_RE}, 0xffff0000, v{V_RE}')
    e.label('L_reA')
    e(f'v_mul_f32 v5, v{V_RE}, v{V_DTL}')
    e(f'v_mul_f32 v6, v{V_IM}, v{V_DTR}')
    e(f'v_exp_f32 v{V_W+2}, v5')
    e(f'v_cos_f32 v{V_W}, v6')
    e(f'v_sin_f32 v{V_W+1}, v6')
    P = {}
    nxt = [V_P]
    def reg(x):
        if x not in P: P[x] = nxt[0]; nxt[0] += 1
        return P[x]
    W = v(V_W,2); WT = v(V_W+2,2)
    pend = []
    def flush():
        for t in pend: e(t)
        pend.clear()
    def wr(rg, row):
        pend.append(f'ds_write_addtid_b32 v{rg} offset:{row*RS}')
        if len(pend) >= 2: flush()
    def anchor(x, row=None):
        if x > 1:
            e(f'v_pk_mul_f32 {WT}, {W}, {W} op_sel:[0,0] op_sel_hi:[0,1]')
            e(f'v_pk_fma_f32 {W}, {W}, {W}, {WT} op_sel:[1,1,0] op_sel_hi:[1,0,1] neg_lo:[0,1,0]')
        e(f'v_cvt_pk_f16_f32 v{reg(x)}, v{V_W}, v{V_W+1}')
        if row is not None: wr(reg(x), row)
    def prod(x, a, b, row, conj=False):
        d = reg(x); a = reg(a); b = reg(b)
        if conj:
            e(f'v_pk_mul_f16 v{d}, v{a}, v{b} op_sel:[0,0] op_sel_hi:[0,1] neg_hi:[0,1]')
            e(f'v_pk_fma_f16 v{d}, v{a}, v{b}, v{d} op_sel:[1,1,0] op_sel_hi:[1,0,1]')
        else:
            e(f'v_pk_mul_f16 v{d}, v{a}, v{b} op_sel:[0,0] op_sel_hi:[0,1]')
            e(f'v_pk_fma_f16 v{d}, v{a}, v{b}, v{d} op_sel:[1,1,0] op_sel_hi:[1,0,1] neg_lo:[0,1,0]')
        wr(d, row)
    def rd(dst, addr):
        flush()
        for s_ in range(4): e(f'ds_read_b128 {v(dst+4*s_,4)}, v{addr} offset:{64*s_}')
    def mm(t):
        for s_ in range(4):
            a, b = v(V_TF+16*t+4*s_,4), v(V_QF+4*s_,4)
            if t == 2: a, b = b, a
            e(f'v_mfma_f32_16x16x32_f16 {v(V_ACC+4*t,4)}, {a}, {b}, {v(V_ACC+4*t,4)}')
    P['q0'] = V_Q0
    e(f'v_mov_b32 v{V_RE}, v{V_RE+1}')
    e(f'v_pk_mul_f32 {W}, {W}, {WT} op_sel:[0,0] op_sel_hi:[1,0]')
    for hb in (1, 2, 4, 8):
        anchor(hb, hb)
        for x in range(hb+1, 2*hb): prod(x, x-hb, hb, x)
    rd(V_TF, V_RA1)
    wr(V_Q0, 0)
    for hb in (1, 2, 4, 8):
        anchor(16*hb)
        for x in range(hb, 2*hb): prod(f'q{x}', f'q{x-hb}', 16*hb, x, conj=True)
    rd(V_QF, V_RAQ)
    anchor(256, 0)
    for x in range(2, 17, 2): prod(256+x, x, 256, x//2)
    rd(V_TF+16, V_RA2)
    mm(0)
    anchor(512)
    for i, x in enumerate((4,8,12,16,260,264,268,272)): prod(512+x, x, 512, i)
    mm(1)
    anchor(1024)
    for i, x in enumerate((8,16,264,272,520,528,776,784)): prod(1024+x, x, 1024, 8+i)
    rd(V_TF+32, V_RAQ)
    e(f'v_mov_b32 v{V_RE+1}, v{V_RE+2}')
    e(f'v_mov_b32 v{V_IM}, v{V_IM+1}')
    e(f'v_mov_b32 v{V_IM+1}, v{V_IM+2}')
    e(f'v_mov_b32 v{V_Q0}, v{V_Q0+1}')
    e(f'v_mov_b32 v{V_Q0+1}, v{V_Q0+2}')
    e(f's_sub_u32 s{S_NP}, s{S_NP}, 1')
    mm(2)
    assert nxt[0] <= V_BADDR
    e(f's_cmp_eq_u32 s{S_Z}, 1')
    e(f's_cbranch_scc1 L_zend')
    e.label('L_passend')
    e(f's_cmp_eq_u32 s{S_NP}, 0')
    e(f's_cbranch_scc1 L_kdone')
    e(f's_cmp_eq_u32 s{S_NP}, 1')
    e(f's_cbranch_scc0 L_pass')
    e(f'v_add_u32 v5, {1024*1280}, v{V_UA}')
    e(f'global_load_dwordx2 {v(V_UL+4,2)}, v5, {sr(P_U,2)}')
    e(f'global_load_dwordx2 {v(V_UL+6,2)}, v5, {sr(P_U,2)} offset:1280')
    e(f's_branch L_pass')
    e.label('L_zend')
    e(f'v_mul_f32 v5, s{S_SCL}, v{V_DT}')
    e(f's_mul_i32 s{S_T0}, s{S_ZI}, 3072')
    e(f's_add_u32 s{S_T0}, s{S_T0}, {L_OS}')
    e(f'v_add_u32 v6, s{S_T0}, v{V_L16}')
    e(f's_nop 4')
    for r in range(12): e(f'v_mul_f32 v{V_ACC+r}, v5, v{V_ACC+r}')
    for t in range(3): e(f'ds_write_b128 v6, {v(V_ACC+4*t,4)} offset:{1024*t}')
    e(f's_lshl_b32 s{S_T0}, s{S_ZI}, 2')
    e(f's_add_u32 s{S_T0}, s{S_T0}, {F_Z}')
    e(f'v_mov_b32 v6, s{S_T0}')
    e(f'v_mov_b32 v7, 1')
    e(f'ds_write_b32 v6, v7')
    e(f's_add_u32 s{S_ZI}, s{S_ZI}, 1')
    e.wait(lg=0)
    for r in range(12): e(f'v_mov_b32 v{V_ACC+r}, 0')
    e(f's_cmp_eq_u32 s{S_NP}, 0')
    e(f's_cbranch_scc0 L_passend')
    e(f's_branch L_ustage')
    e.label('L_kdone')
    e.reset()
    stamp(3)
    e(f'v_mul_f32 v5, s{S_SCL}, v{V_DT}')
    e(f'v_cmp_eq_u32 vcc, 0, v0')
    e(f'v_cndmask_b32 v{V_DSK}, 0, v{V_DSK}, vcc')
    e(f's_and_b32 s{S_T0}, s{S_W}, 6')
    e(f's_cmp_eq_u32 s{S_T0}, 4')
    e(f's_cbranch_scc1 L_fF')
    e(f's_lshl_b32 s{S_T0}, s{S_W}, 2')
    e(f's_lshr_b32 s{S_T0}, 0x03000120, s{S_T0}')
    e(f's_and_b32 s{S_T0}, s{S_T0}, 15')
    e(f's_lshl_b32 s{S_T1}, s{S_T0}, 2')
    e(f's_add_u32 s{S_T1}, s{S_T1}, {F_Z}')
    e(f'v_mov_b32 v7, s{S_T1}')
    e(f's_mul_i32 s{S_T0}, s{S_T0}, 3072')
    e(f's_add_u32 s{S_T0}, s{S_T0}, {L_OS}')
    e(f'v_add_u32 v6, s{S_T0}, v{V_L16}')
    e.label('L_zpoll')
    spin()
    e(f'ds_read_b32 v8, v7')
    for t in range(3): e(f'ds_read_b128 {v(V_TF+4*t,4)}, v6 offset:{1024*t}')
    e.wait(lg=0)
    e(f'v_readfirstlane_b32 s{S_T0}, v8')
    e(f's_cmp_eq_u32 s{S_T0}, 0')
    e(f's_cbranch_scc1 L_zpoll')
    for r in range(12): e(f'v_fma_f32 v{V_ACC+r}, v5, v{V_ACC+r}, v{V_TF+r}')
    e(f's_branch L_fW')
    e.label('L_fF')
    e(f's_nop 4')
    for r in range(12): e(f'v_mul_f32 v{V_ACC+r}, v5, v{V_ACC+r}')
    e.label('L_fW')
    e.reset()
    e(f'v_add_f32 v{V_ACC}, v{V_ACC}, v{V_DSK}')
    for t in range(3):
        a = V_ACC+4*t; k = V_QF+4*t
        ad = V_KW3 if t == 2 else V_KW1
        off = 512 if t == 0 else 0
        e(f'v_cvt_pk_bf16_f32 v{k}, v{a+3}, v{a+2}')
        e(f'v_cvt_pk_bf16_f32 v{k+1}, v{a+1}, v{a}')
        e(f'v_cvt_pk_bf16_f32 v{k+2}, v{a+2}, v{a+1}')
        e(f'ds_write_b64 v{ad}, {v(k,2)} offset:{off}')
        for s_ in (1, 3):
            o = off + s_*CS + 2*s_
            e(f'ds_write_b16 v{ad}, v{k} offset:{o}')
            e(f'ds_write_b32 v{ad}, v{k+2} offset:{o+2}')
            e(f'ds_write_b16_d16_hi v{ad}, v{k+1} offset:{o+6}')
        o = off + 2*CS + 4
        e(f'ds_write_b32 v{ad}, v{k} offset:{o}')
        e(f'ds_write_b32 v{ad}, v{k+1} offset:{o+4}')
    e(f'v_readlane_b32 s{S_T0}, v{V_QF+4}, 63')
    e(f'v_readlane_b32 s{S_T1}, v{V_QF+8}, 55')
    e(f'v_cmp_gt_u32 vcc, 12, v0')
    e(f'v_mov_b32 v5, s{S_T0}')
    e(f'v_mov_b32 v6, s{S_T1}')
    e(f'v_cndmask_b32 v5, v6, v5, vcc')
    e(f's_mov_b64 exec, 0xfffff')
    e(f'ds_write_b16 v{V_KWS}, v5')
    e(f's_mov_b64 exec, -1')
    e.label('L_ustage')
    e.reset()
    stamp(4)
    GV = V_P
    e(f's_cmp_eq_u32 s{S_W}, 6')
    e(f's_cbranch_scc0 L_us1')
    e(f'v_add_u32 v9, 4096, v{V_L16}')
    for h in range(8): e(f'global_load_dwordx4 {v(GV+4*h,4)}, v{V_L16 if h < 4 else 9}, {sr(P_WS,2)} offset:{1024*(h&3)} sc1')
    e.wait(vm=8)
    e(f's_branch L_us2')
    e.label('L_us1')
    e.wait(vm=0)
    e.label('L_us2')
    e.reset()
    e(f's_lshl_b32 s{S_T0}, s{S_W}, 8')
    e(f's_mov_b32 m0, s{S_T0}')
    e(f's_xor_b32 s{S_T1}, s{S_PSEL}, 0x02020202')
    e(f's_cmp_eq_u32 s{S_SEL}, 0')
    for half in range(2):
        ev = V_UL+4*half; od = ev+2
        e(f'v_perm_b32 v5, v{od}, v{ev}, s{S_PSEL}')
        e(f'v_perm_b32 v7, v{od+1}, v{ev+1}, s{S_PSEL}')
        e(f'v_perm_b32 v6, v{od}, v{ev}, s{S_T1}')
        e(f's_cbranch_scc1 L_usel{half}')
        e(f'v_perm_b32 v6, v{od+1}, v{ev+1}, s{S_T1}')
        e.label(f'L_usel{half}')
        for ch in range(3): e(f'ds_write_addtid_b32 v{5+ch} offset:{L_U+ch*US+512+2048*half}')
    e.wait(lg=0)
    stamp(5)
    e(f's_barrier')
    stamp(6)
    e(f's_cmp_lt_u32 s{S_W}, 3')
    e(f's_cbranch_scc1 L_main')
    e(f's_cmp_eq_u32 s{S_Z}, 1')
    e(f's_cbranch_scc1 L_far')
    e(f's_cmp_eq_u32 s{S_W}, 6')
    e(f's_cbranch_scc0 L_store')
    e.label('L_gchk')
    e.reset()
    e.wait(vm=0)
    e(f'v_xor_b32 v5, s{S_TAG}, v{GV+1}')
    for k in range(1, 16):
        e(f'v_xor_b32 v6, s{S_TAG}, v{GV+2*k+1}')
        e(f'v_or_b32 v5, v5, v6')
    e(f'v_cmp_ne_u32 vcc, 0, v5')
    e(f's_cbranch_vccz L_gok')
    spin()
    for h in range(8): e(f'global_load_dwordx4 {v(GV+4*h,4)}, v{V_L16 if h < 4 else 9}, {sr(P_WS,2)} offset:{1024*(h&3)} sc1')
    e(f's_branch L_gchk')
    e.label('L_gok')
    e.reset()
    e(f'v_add_u32 v5, {L_GT}, v{V_L16}')
    for h in range(8):
        g = GV+4*h
        e(f'v_and_b32 v{g+1}, 0xffff0000, v{g}')
        e(f'v_lshlrev_b32 v{g}, 16, v{g}')
        e(f'v_and_b32 v{g+3}, 0xffff0000, v{g+2}')
        e(f'v_lshlrev_b32 v{g+2}, 16, v{g+2}')
        e(f'ds_write_b128 v5, {v(g,4)} offset:{1024*h}')
    e(f'v_mov_b32 v5, {F_FAR+8}')
    e(f'v_mov_b32 v6, 64')
    e(f'ds_write_b32 v5, v6')
    stamp(7)
    e(f's_cmp_eq_u32 s2, 255')
    e(f's_cbranch_scc0 L_fin')
    e(f'v_mov_b32 v5, {WS_EPOCH}')
    e(f'v_mov_b32 v6, s{S_TAG}')
    e(f's_mov_b64 exec, 1')
    e(f'global_store_dword v5, v6, {sr(P_WS,2)}')
    e(f's_mov_b64 exec, -1')
    e(f's_branch L_fin')
    e.label('L_store')
    e.reset()
    e(f's_mov_b32 s{S_SRD}, s{P_OUT}')
    e(f's_mov_b32 s{S_SRD+1}, s{P_OUT+1}')
    e(f's_mov_b32 s{S_SRD+2}, 2621440')
    e(f's_mov_b32 s{S_SRD+3}, 0x20000')
    e(f'v_lshrrev_b32 v5, 2, v0')
    e(f'v_and_b32 v6, 3, v0')
    e(f'v_mul_u32_u24 v7, 1280, v5')
    e(f'v_add_u32 v8, s{S_D0}, v6')
    e(f'v_lshl_add_u32 v7, v8, 1, v7')
    e(f's_and_b32 s{S_T0}, s{S_W}, 1')
    e(f's_lshl_b32 s{S_T1}, s{S_T0}, 8')
    e(f's_add_u32 s{S_T1}, s{S_T1}, {L_OS}')
    e(f'v_mul_u32_u24 v8, {OSS}, v6')
    e(f'v_lshl_add_u32 v8, v5, 3, v8')
    e(f'v_add_u32 v8, s{S_T1}, v8')
    e(f's_mul_i32 s{S_OFF}, s{S_T0}, {128*1280}')
    e(f'v_mov_b32 v9, {F_OUT}')
    e(f's_mov_b32 s{S_H}, 0')
    e(f's_mov_b32 s{S_T0}, 0x77777777')
    e(f's_mov_b32 exec_lo, s{S_T0}')
    e(f's_mov_b32 exec_hi, s{S_T0}')
    e.label('L_sloop')
    e.reset()
    spin()
    e(f'ds_read_b128 v[12:15], v9')
    e(f'ds_read_b64 v[16:17], v8')
    e(f'ds_read_b64 v[18:19], v8 offset:128')
    e.wait(lg=0)
    e(f'v_min3_u32 v12, v12, v13, v14')
    e(f'v_readfirstlane_b32 s{S_T0}, v12')
    e(f's_cmp_gt_u32 s{S_T0}, s{S_H}')
    e(f's_cbranch_scc0 L_sloop')
    for k in range(8):
        op = 'buffer_store_short_d16_hi' if k & 1 else 'buffer_store_short'
        e(f'{op} v{16+k//2}, v7, {sr(S_SRD,4)}, s{S_OFF} offen')
        e(f's_add_u32 s{S_OFF}, s{S_OFF}, {16*1280 if k < 7 else (16+128)*1280}')
    e(f'v_add_u32 v8, 512, v8')
    e(f's_add_u32 s{S_H}, s{S_H}, 1')
    e(f's_cmp_lt_u32 s{S_H}, 8')
    e(f's_cbranch_scc1 L_sloop')
    e(f's_mov_b64 exec, -1')
    e(f's_branch L_fin')
    gen_far()
    gen_main()
    e.label('L_fin')
    e.reset()
    if STAMP:
        e.wait(vm=0, lg=0)
        stamp(11)
        e(f's_lshl_b32 s{S_T0}, s2, 3')
        e(f's_add_u32 s{S_T0}, s{S_T0}, s{S_W}')
        e(f's_lshl_b32 s{S_T0}, s{S_T0}, 6')
        e(f's_add_u32 s{S_T0}, s{S_T0}, {WS_STAMP}')
        e(f'v_mov_b32 v5, s{S_T0}')
        for k in range(12): e(f'v_mov_b32 v{8+k}, s{S_ST+2*k}')
        e(f's_getreg_b32 s{S_T1}, hwreg(HW_REG_HW_ID)')
        e(f'v_mov_b32 v20, s{S_T1}')
        e(f's_mov_b64 exec, 1')
        for k in range(3): e(f'global_store_dwordx4 v5, {v(8+4*k,4)}, {sr(P_WS,2)} offset:{16*k}')
        e(f'global_store_dword v5, v20, {sr(P_WS,2)} offset:48')
        e(f's_mov_b64 exec, -1')
    if DUMP:
        e.wait(vm=0, lg=0)
        e(f's_barrier')
        e(f's_lshl_b32 s{S_T0}, s{S_W}, 14')
        e(f'v_add_u32 v5, s{S_T0}, v{V_L16}')
        e(f's_lshl_b32 s{S_T1}, s2, 17')
        e(f's_add_u32 s{S_T1}, s{S_T1}, {WS_DUMP}')
        e(f'v_add_u32 v6, s{S_T1}, v5')
        for k in range(16):
            e(f'v_min_u32 v7, {LDS_BYTES-16}, v5')
            e(f'ds_read_b128 v[8:11], v7')
            e(f'global_store_dwordx4 v6, v[8:11], {sr(P_WS,2)}')
            e.wait(vm=0)
            e(f'v_add_u32 v5, 1024, v5')
            e(f'v_add_u32 v6, 1024, v6')
    e.label('L_end')
    e.label('L_giveup')
    e(f's_endpgm')
    e.raw('L_codeend:')

MF = 'v_mfma_f32_16x16x32_bf16'
def mfma(d, a, b, c=None):
    cs = '0' if c is None else v(c,4)
    return f'{MF} {v(d,4)}, {v(a,4)}, {v(b,4)}, {cs}'

def gen_far():
    KAP = 0
    WR = 72
    WT = 120
    AF = 152
    ACC = 168
    A0, A1, K0, K2, FP, FL, FV = 192, 193, 194, 195, 196, 197, 198
    FP2 = 199
    e.label('L_far')
    e.reset()
    e(f's_lshr_b32 s{S_T0}, s{S_W}, 2')
    e(f's_mul_i32 s{S_T1}, s{S_T0}, {US}')
    e(f's_add_u32 s{S_T1}, s{S_T1}, {L_U+512-48}')
    e(f'v_add_u32 v{A0}, s{S_T1}, v{V_AADDR}')
    e(f'v_add_u32 v{A1}, {L_U+2*US+512-48}, v{V_AADDR}')
    e(f's_mul_i32 s{S_T1}, s{S_T0}, {2*KS}')
    e(f's_add_u32 s{S_T1}, s{S_T1}, {L_KC+FARB}')
    e(f'v_add_u32 v{K0}, s{S_T1}, v{V_KADDR}')
    e(f's_mul_i32 s{S_T1}, s{S_T0}, {KS}')
    e(f's_add_u32 s{S_T1}, s{S_T1}, {L_KC+4*KS+FARB}')
    e(f'v_add_u32 v{K2}, s{S_T1}, v{V_KADDR}')
    e(f's_lshl_b32 s{S_T1}, s{S_T0}, 11')
    e(f'v_add_u32 v{FP}, s{S_T1}, v{V_L16}')
    e(f's_lshl_b32 s{S_T1}, s{S_T0}, 10')
    e(f's_add_u32 s{S_T1}, s{S_T1}, 4096')
    e(f'v_add_u32 v{FP2}, s{S_T1}, v{V_L16}')
    e(f's_lshl_b32 s{S_T1}, s{S_T0}, 2')
    e(f's_add_u32 s{S_T1}, s{S_T1}, {F_FAR}')
    e(f'v_mov_b32 v{FL}, s{S_T1}')
    def rdA(i):
        for c in range(2):
            e(f'ds_read_b128 {v(AF+8*c,4)}, v{A0+c} offset:{512*i+16}')
            e(f'ds_read_b128 {v(AF+8*c+4,4)}, v{A0+c} offset:{512*i}')
    def rdK(dl):
        for u in range(3):
            ad, uo = (K0, u*KS) if u < 2 else (K2, 0)
            for g in range(4):
                r = KAP + ((u*3+dl)*2 + g//2)*4 + (g&1)*2
                e(f'ds_read_b64 {v(r,2)}, v{ad} offset:{uo + 2*(GPOS[g]-16*dl)}')
    def win(i):
        for c in range(2):
            for g in range(4):
                e(mfma(WT+16*c+4*g, AF+8*c+4*(g//2), V_BAND+4*(g&1)))
    def cvt(i):
        for c in range(2):
            for g in range(4):
                t = WT+16*c+4*g; r = WR + ((c*3+i%3)*2+g//2)*4 + (g&1)*2
                e(f'v_cvt_pk_bf16_f32 v{r}, v{t}, v{t+1}')
                e(f'v_cvt_pk_bf16_f32 v{r+1}, v{t+2}, v{t+3}')
    def mm(i, dls):
        par = i & 1
        for dl in dls:
            if i-dl < 0: continue
            for p in range(2):
                for u in range(3):
                    c = 0 if u < 2 else 1
                    first = (dl == min(2, i) and p == 0)
                    acc = ACC+12*par+4*u
                    e(mfma(acc, KAP+((u*3+dl)*2+p)*4, WR+((c*3+(i-dl)%3)*2+p)*4, None if first else acc))
    def out(i):
        par = i & 1
        for u in range(3):
            ad, o = (FP, u*1024) if u < 2 else (FP2, 0)
            e(f'ds_write_b128 v{ad}, {v(ACC+12*par+4*u,4)} offset:{L_FP + i*6144 + o}')
        e(f'v_mov_b32 v{FV}, {i+3}')
        e(f'ds_write_b32 v{FL}, v{FV}')
    rdA(0); rdK(0)
    for i in range(6):
        win(i)
        if i < 5: rdA(i+1)
        if i < 2: rdK(i+1)
        if i: out(i-1)
        mm(i, (2, 1))
        cvt(i)
        mm(i, (0,))
    out(5)
    e(f's_branch L_fin')

def gen_main():
    BA, BB = 0, 68
    AR = 136
    A16 = 168
    ACC = 172
    PART = 188
    GATE = 196
    W3 = 200
    X = 216
    WT, AW = X, X+8
    K3, AC, CB = X, X+16, X+20
    FLG = PART
    e.label('L_main')
    e.reset()
    e(f's_setprio 2')
    BAD, AAD, KAD, L16 = V_BADDR, V_AADDR, V_KADDR, V_L16
    e(f's_mul_i32 s{S_T0}, s{S_W}, {2*KS}')
    e(f's_add_u32 s{S_T1}, s{S_T0}, {L_KC + 2*(N0-16-32*17)}')
    e(f'v_add_u32 v{BAD}, s{S_T1}, v{BAD}')
    e(f's_add_u32 s{S_T1}, s{S_T0}, {L_KC + FARB}')
    e(f'v_add_u32 v{KAD}, s{S_T1}, v{KAD}')
    e(f's_mul_i32 s{S_T1}, s{S_W}, {US}')
    e(f's_add_u32 s{S_T1}, s{S_T1}, {L_U}')
    e(f'v_add_u32 v{AAD}, s{S_T1}, v{AAD}')
    def rdB(j, s_, dst=None):
        r = dst if dst is not None else (BB if s_ else BA)+4*j
        o = s_*KS + 64*(17-j)
        return [f'ds_read_b64 {v(r,2)}, v{BAD} offset:{o}', f'ds_read_b64 {v(r+2,2)}, v{BAD} offset:{o+8}']
    def rdA(dst, m, off=-16):
        return f'ds_read_b128 {v(dst,4)}, v{AAD} offset:{512 + 2*(32*m+off)}'
    def rdK3(dst, dl, s_):
        return [f'ds_read_b64 {v(dst+2*a,2)}, v{KAD} offset:{s_*KS + 2*(GPOS[4+a]-16*dl)}' for a in range(2)]
    S_FP, S_OS, S_FO = S_T2, S_T3, S_OFF
    e(f's_lshl_b32 s{S_FP}, s{S_W}, 11')
    e(f's_mul_i32 s{S_OS}, s{S_W}, {OSS}')
    e(f's_add_u32 s{S_OS}, s{S_OS}, {L_OS}')
    e(f's_lshl_b32 s{S_FO}, s{S_W}, 2')
    e(f's_add_u32 s{S_FO}, s{S_FO}, {F_OUT}')
    return_main(BA, BB, AR, A16, ACC, PART, GATE, W3, WT, AW, K3, AC, CB, rdB, rdA, rdK3, S_FP, S_OS, S_FO)

def return_main(BA, BB, AR, A16, ACC, PART, GATE, W3, WT, AW, K3, AC, CB, rdB, rdA, rdK3, S_FP, S_OS, S_FO):
    L16 = V_L16
    def ep_reads(h):
        r = [f'v_mov_b32 v{PART}, {F_FAR}',
             f'v_add_u32 v{GATE}, {L_GT}, v{L16}',
             f'v_add_u32 v{PART+4}, s{S_FP}, v{L16}',
             f'ds_read_b96 {v(FLAG,3)}, v{PART}',
             f'ds_read_b128 {v(GATE,4)}, v{GATE} offset:{1024*h}']
        if h >= 2:
            r += [f'ds_read_b128 {v(PART,4)}, v{PART+4} offset:{L_FP+(h-2)*6144}',
                  f'ds_read_b128 {v(PART+4,4)}, v{PART+4} offset:{L_FP+(h-2)*6144+1024}']
        return r
    def ep_check(h):
        return [f'v_min3_u32 v{FLAG}, v{FLAG}, v{FLAG+1}, v{FLAG+2}',
                f'v_readfirstlane_b32 s{S_T0}, v{FLAG}',
                f's_cmp_gt_u32 s{S_T0}, {h}',
                f'RETRY {h}']
    def ep_math(h):
        a = ACC+8*(h&1); b = a+4
        r = []
        if h >= 2:
            r += [f'v_add_f32 v{a+i}, v{a+i}, v{PART+i}' for i in range(8)]
        r += [f'v_sub_f32 v{a+i}, v{a+i}, v{b+i}' for i in range(4)]
        r += [f'v_fma_f32 v{a+i}, v{GATE+i}, v{a+i}, v{b+i}' for i in range(4)]
        r += [f'v_cvt_pk_bf16_f32 v{PART}, v{a}, v{a+1}', f'v_cvt_pk_bf16_f32 v{PART+1}, v{a+2}, v{a+3}',
              f'v_lshrrev_b32 v{PART+2}, 1, v{L16}',
              f'v_add_u32 v{PART+2}, s{S_OS}, v{PART+2}',
              f'v_mov_b32 v{PART+3}, s{S_FO}',
              f'v_mov_b32 v{PART+4}, {h+1}',
              f'ds_write_b64 v{PART+2}, {v(PART,2)} offset:{512*h}',
              f'ds_write_b32 v{PART+3}, v{PART+4}']
        return r
    FLAG = A16 + 0
    FLAG = 240
    CBr = V_BAND
    retries = []
    def emit(t):
        if t.startswith('RETRY'):
            h = int(t.split()[1])
            e(f's_cbranch_scc0 L_retry{h}')
            e.raw(f'L_back{h}:')
            retries.append(h)
        else: e(t)
    def run(mf, fill):
        for k, m in enumerate(mf):
            e(m)
            for t in fill.get(k, []): emit(t)
    def spread(fill, items, start, per=2):
        k = start
        for t in items:
            while len(fill.setdefault(k, [])) >= per: k += 1
            fill[k].append(t)
        return k
    for j in range(8):
        e(rdA(AR+4*j, -j))
        for s_ in range(2):
            for t in rdB(j, s_): e(t)
        if j == 1: break
    for h in range(8):
        a = ACC+8*(h&1); b = a+4
        mf = []; fill = {}
        first = [True]
        def two(A, Ba, Bb, swap=False):
            c0, c1 = (None, None) if first[0] else (a, b)
            first[0] = False
            if swap:
                mf.append(mfma(a, Ba, A, c0)); mf.append(mfma(b, Bb, A, c1))
            else:
                mf.append(mfma(a, A, Ba, c0)); mf.append(mfma(b, A, Bb, c1))
        if h == 0:
            for j in range(8):
                two(AR+4*j, BA+4*j, BB+4*j)
                its = []
                if j+2 < 8: its = [rdA(AR+4*(j+2), -(j+2))] + rdB(j+2, 0) + rdB(j+2, 1)
                else: its = rdB(j+2, 0) + rdB(j+2, 1)
                fill[2*j] = its[:3]; fill[2*j+1] = its[3:]
            fill[15].append(rdA(AW, 0, -24))
            run(mf, fill)
            continue
        i = h-1
        pre = 0
        if i < 4:
            mf.append(mfma(WT, AR, V_BAND)); mf.append(mfma(WT+4, AW, V_BAND+4)); pre = 2
        for j in range(8):
            two(AR+4*j, BA+4*(j+8), BB+4*(j+8))
            fill.setdefault(pre+2*j+1, []).append(rdA(AR+4*j, 8*h-j))
            if h == 1 and j+10 <= 16:
                fill.setdefault(pre+2*j, []).extend(rdB(j+10, 0) + rdB(j+10, 1))
        if h >= 2:
            fill.setdefault(0, []).append(rdA(A16, 8*(h-2)))
            two(A16, BA+64, BB+64)
        k = spread(fill, ep_reads(h-1), 0, per=3)
        k = spread(fill, ep_check(h-1), k+3, per=3)
        k = spread(fill, ep_math(h-1), k, per=3)
        if i < 4:
            cv = [f'v_cvt_pk_bf16_f32 v{W3+4*i+q}, v{WT+2*q}, v{WT+2*q+1}' for q in range(4)]
            k = spread(fill, cv, 6, per=3)
            assert h != 4 or k < len(mf)+2, (h, k)
            if i < 3: spread(fill, [rdA(AW, 8*(i+1), -24)], k+1, per=3)
        base = len(mf)
        for j in range(8): two(AR+4*j, BA+4*j, BB+4*j)
        if h >= 4:
            its = [rdA(AC, 8*(h-4))]
            if h == 4: its += rdB(17, 0, CBr) + rdB(17, 1, CBr+4)
            its += rdK3(K3, 0, 0) + rdK3(K3+4, 0, 1)
            if h >= 5: its += rdK3(K3+8, 1, 0) + rdK3(K3+12, 1, 1)
            spread(fill, its, base+2, per=2)
            two(AC, CBr, CBr+4)
            for dl in range(h-3):
                kk = K3+8*(dl&1)
                two(W3+4*(h-4-dl), kk, kk+4, swap=True)
                if dl+2 < h-3:
                    fill.setdefault(len(mf)-1, []).extend(rdK3(kk, dl+2, 0) + rdK3(kk+4, dl+2, 1))
        assert max(fill) < len(mf), (h, max(fill), len(mf))
        run(mf, fill)
    for t in ep_reads(7) + ep_check(7) + ep_math(7): emit(t)
    e(f's_branch L_fin')
    for h in retries:
        e.label(f'L_retry{h}')
        e.reset()
        spin()
        e(f's_nop 7')
        for t in ep_reads(h): e(t)
        e.wait(lg=0)
        for t in ep_check(h)[:3]: e(t)
        e(f's_cbranch_scc0 L_retry{h}')
        e(f's_branch L_back{h}')

build()
hdr = open('gated_mix__ssm_conv_s4__ssm_conv_s4d__prompt.s.ref').read()
head = hdr[:hdr.index('; @launch')]
out = head + f'; @launch grid=(256,1,1) block=(512,1,1) lds={LDS_BYTES}\n'
out += f'''.amdgcn_target "amdgcn-amd-amdhsa--gfx950"
.text
.globl {NAME}
.p2align 8
.type {NAME},@function
'''
out += e.text()
out += f'''.section .rodata,"a"
.p2align 6
.amdhsa_kernel {NAME}
  .amdhsa_next_free_vgpr 256
  .amdhsa_next_free_sgpr 102
  .amdhsa_accum_offset 256
  .amdhsa_group_segment_fixed_size 0
  .amdhsa_kernarg_size 160
  .amdhsa_user_sgpr_count 2
  .amdhsa_user_sgpr_kernarg_segment_ptr 1
  .amdhsa_system_sgpr_workgroup_id_x 1
.end_amdhsa_kernel
'''
dst = sys.argv[1] if len(sys.argv) > 1 else 'gated_mix__ssm_conv_s4__ssm_conv_s4d__prompt.s'
open(dst, 'w').write(out)
print('wrote', dst, e.count, 'instructions')
```

```python
import re
def regs_of(tok):
    tok = tok.strip()
    tok = re.sub(r'^-|^abs\(|^\||\)$|\|$', '', tok)
    tok = re.sub(r'^abs\(|^\|', '', tok)
    m = re.fullmatch(r'([vs])(\d+)', tok)
    if m: return [(m.group(1), int(m.group(2)))]
    m = re.fullmatch(r'([vs])\[(\d+):(\d+)\]', tok)
    if m: return [(m.group(1), i) for i in range(int(m.group(2)), int(m.group(3))+1)]
    if tok == 'vcc': return [('s',106),('s',107)]
    if tok == 'exec': return [('s',126),('s',127)]
    if tok == 'm0': return [('s',124)]
    return []
TRANS = ('v_exp_f32','v_log_f32','v_rcp_f32','v_rsq_f32','v_sqrt_f32','v_sin_f32','v_cos_f32')
class Ins:
    def __init__(s, text):
        s.text = text
        t = text.split(';')[0].strip()
        p = t.split(None, 1)
        s.op = p[0]
        rest = p[1] if len(p) > 1 else ''
        ops = [x.strip() for x in re.split(r',(?![^\[]*\])', rest)] if rest else []
        if ops:
            last = ops[-1].split()
            s.mods = ' '.join(last[1:]); ops[-1] = last[0] if last else ''
        else: s.mods = ''
        s.ops = ops
        op = s.op
        s.mfma = op.startswith('v_mfma')
        s.valu = op.startswith('v_') and not s.mfma
        s.ds = op.startswith('ds_')
        s.vmem = op.startswith(('buffer_','global_'))
        s.salu = op.startswith('s_')
        s.smem = op.startswith(('s_load','s_memtime','s_memrealtime','s_buffer_load'))
        s.trans = op.startswith(TRANS)
        s.dpp = ('_dpp' in op) or ('row_' in s.mods) or ('quad_perm' in s.mods) or ('wave_' in s.mods)
        R = [regs_of(o) for o in ops]
        w, r = [], []
        store = ('store' in op) or op.startswith('ds_write') or op.startswith(('s_cmp','s_cbranch','s_branch','s_waitcnt','s_nop','s_barrier','s_endpgm','s_setprio','s_sleep','s_bitcmp'))
        if store:
            for x in R: r += x
        else:
            if R: w += R[0]
            for x in R[1:]: r += x
            if op.startswith(('v_fmac','v_pk_fmac','v_dot2c')) or 'd16' in op or s.dpp or op.startswith('v_writelane'): r += R[0]
            if op.startswith(('v_add_co','v_sub_co','v_addc_co')): w += R[1]
            if op.startswith('v_permlane') and 'swap' in op: w += R[1]; r += R[0]
            if op.endswith('saveexec_b64'): w += [('s',126),('s',127)]
        if op.startswith('v_cmp') and ops[0] == 'vcc': pass
        if op.startswith('v_cndmask') and len(ops) == 3: r += [('s',106),('s',107)]
        if 'addtid' in op: r += [('s',124)]
        s.w, s.r = set(w), set(r)
        if s.mfma:
            s.srcc = set(R[3]); s.srcab = set(R[1]+R[2])
class Emitter:
    def __init__(s):
        s.lines = []; s.hist = []
        s.lg = []; s.vm = []
        s.count = 0
    def raw(s, t): s.lines.append(t)
    def comment(s, t): s.lines.append('    ; ' + t)
    def label(s, name):
        s.lines.append(name + ':'); s.barrier_state()
    def barrier_state(s):
        s.hist_unknown = True
    def reset(s):
        s.hist = []; s.lg = []; s.vm = []
    def _need(s, i):
        need = 0; d = 0
        for (p, st) in reversed(s.hist):
            if d >= 20: break
            req = 0
            pv = {x for x in p.w if x[0]=='v'}; ps = {x for x in p.w if x[0]=='s'}
            if p.mfma:
                if i.mfma:
                    if pv & i.srcab: req = 8
                    elif (pv & i.srcc) and pv != i.srcc: req = 6
                    elif (pv & i.w) and pv != i.srcc: req = 6
                elif (i.valu or i.ds or i.vmem) and (pv & (i.r | i.w)): req = 8
                if i.valu and (p.srcc & i.w): req = max(req, 3)
            if p.valu:
                if i.mfma and (pv & i.r): req = max(req, 2)
                if p.trans and i.valu and not i.trans and (pv & i.r): req = max(req, 1)
                if p.trans and (i.ds or i.vmem) and (pv & i.r): req = max(req, 1)
                if i.dpp and (pv & i.r): req = max(req, 2)
                if i.op.startswith(('v_readlane','v_readfirstlane')) and (pv & i.r): req = max(req, 1)
                if i.op.startswith('v_permlane') and (pv & i.r): req = max(req, 2)
                if ps:
                    if i.valu and (ps & i.r): req = max(req, 2)
                    if i.op.startswith(('v_readlane','v_writelane')) and (ps & i.r): req = max(req, 4)
                    if i.vmem and (ps & i.r): req = max(req, 5)
                    if i.salu and (ps & i.r): req = max(req, 1)
                if p.op.startswith('v_dot') and (pv & (i.r|i.w)) and not (i.op == p.op and (pv & i.r) and regs_of(i.ops[-1]) and set(regs_of(i.ops[3] if len(i.ops)>3 else i.ops[0])) == pv and not (pv & set(regs_of(i.ops[1])+regs_of(i.ops[2])))): req = max(req, 3)
                if ('op_sel' in p.mods and not p.op.startswith('v_pk')) and i.valu and (pv & (i.r|i.w)): req = max(req, 1)
            if p.salu and ('s',124) in p.w and ('s',124) in i.r: req = max(req, 1)
            if p.salu and (('s',126) in p.w or ('s',127) in p.w) and i.dpp: req = max(req, 0)
            if p.vmem and 'store' in p.op and ('x4' in p.op or 'x3' in p.op) and i.valu and (p.r & i.w): req = max(req, 2)
            need = max(need, req - d)
            d += st
        return need
    def _push(s, i, st=1):
        s.hist.append((i, st)); s.lines.append('    ' + i.text); s.count += 1
        if len(s.hist) > 40: s.hist = s.hist[-30:]
    def wait(s, lg=None, vm=None):
        parts = []
        if vm is not None: parts.append(f'vmcnt({vm})'); s.vm = s.vm[len(s.vm)-vm:] if vm else []
        if lg is not None: parts.append(f'lgkmcnt({lg})'); s.lg = s.lg[len(s.lg)-lg:] if lg else []
        s._push(Ins('s_waitcnt ' + ' '.join(parts)))
    def _autowait(s, i):
        touched = i.r | i.w
        lg = None; vm = None
        for k, regs in enumerate(s.lg):
            if regs == 'smem':
                continue
            if regs & touched: lg = len(s.lg) - 1 - k
        if lg is not None and any(x == 'smem' for x in s.lg): lg = 0
        for k, regs in enumerate(s.vm):
            if regs & touched: vm = len(s.vm) - 1 - k
        if lg is not None and lg > 14:
            lg = 14
        if lg is not None or vm is not None: s.wait(lg, vm)
    def __call__(s, text, nowait=False):
        i = Ins(text)
        if not nowait: s._autowait(i)
        n = s._need(i)
        while n > 0:
            k = min(n, 16)
            s._push(Ins(f's_nop {k-1}'), k); n -= k
        st = 1
        if i.op == 's_nop': st = int(i.ops[0]) + 1
        s._push(i, st)
        if i.ds: s.lg.append(set(i.w))
        if i.vmem: s.vm.append(set(i.w))
        if i.smem: s.lg.append('smem')
        return i
    def text(s): return '\n'.join(s.lines) + '\n'
def v(a, n=1): return f'v{a}' if n == 1 else f'v[{a}:{a+n-1}]'
def sr(a, n=1): return f's{a}' if n == 1 else f's[{a}:{a+n-1}]'

def prewait(e, texts):
    touched = set()
    for t in texts:
        i = Ins(t); touched |= (i.r | i.w)
    lg = None
    for k, regs in enumerate(e.lg):
        if regs != 'smem' and (regs & touched): lg = len(e.lg) - 1 - k
    if lg is None: return False
    e.wait(lg=min(lg, 14))
    return True

class Sched:
    def __init__(s, e):
        s.e = e; s.mf = []; s.vec = {}; s.sca = {}
    def add_mfma(s, t):
        s.mf.append(t); return len(s.mf)-1
    @staticmethod
    def is_lds(t): return t.startswith('ds_')
    def free(s, k, t, cap=2):
        l = s.vec.get(k, [])
        if len(l) >= cap: return False
        if s.is_lds(t) and any(not s.is_lds(x) for x in l): return False
        return True
    def put(s, t, k, cap=2):
        if t.startswith('s_') or t.startswith('@'):
            while k in s.sca: k += 1
            s.sca[k] = t; return k
        while not s.free(k, t, cap): k += 1
        s.vec.setdefault(k, []).append(t); return k
    def chain(s, items, k, cap=2):
        for t in items:
            if t.startswith('s_') or t.startswith('@'): k = s.put(t, k+1)
            else: k = s.put(t, k, cap)
        return k
    def emit(s, special=None):
        e = s.e
        last = max(list(s.vec)+list(s.sca)+[0])
        assert last < len(s.mf), (last, len(s.mf))
        for k, m in enumerate(s.mf):
            e(m)
            nxt = s.vec.get(k, []) + ([s.mf[k+1]] if k+1 < len(s.mf) else [])
            if k in s.sca:
                t = s.sca[k]
                if t.startswith('@'): special(t)
                else: e(t)
            prewait(e, nxt)
            for t in s.vec.get(k, []): e(t)
```

```python
import sys, os
sys.path.insert(0, os.path.dirname(os.path.abspath(__file__)))
from asmlib import *

NAME = 'gated_mix__ssm_conv_s4__ssm_conv_s4d__prompt_kernel'
STAMP = int(os.environ.get('STAMP', '0'))
FPRIO = int(os.environ.get('FPRIO', '1'))

RS = 288
TABS = 17*RS
L_U = 8*TABS
US = 4608
L_KC = L_U + 3*US
CS = 1984
KS = 4*CS
FARB = 1216
L_FL = L_KC + 6*KS
L_OS = L_FL + 256
OSS = 4384
L_GT = L_OS + 13312
L_ZP = L_GT + 8192
LDS_BYTES = L_ZP + 12288
L_FP = 0
F_FAR = L_FL
F_Z = L_FL + 16
OSM = 49152
N0 = 575
GPOS = [47, 95, 143, 191, 271, 351]
WS_EPOCH = 8192 + 256
WS_STAMP = 1 << 20

P_U, P_ARE, P_AIM, P_BRE, P_BIM, P_CRE, P_CIM, P_ALDT = 4, 6, 8, 10, 12, 14, 16, 18
P_AD, P_BU, P_2RE, P_2IM, P_2CRE, P_2CIM, P_2LDT, P_2D = 20, 22, 24, 26, 28, 30, 32, 34
P_GW, P_OUT, P_DBG, P_WS = 36, 38, 40, 42
S_W = 3; S_XCD = 44; S_IDX = 45; S_Q = 46; S_D0 = 47; S_T0 = 48; S_T1 = 49; S_T2 = 50; S_T3 = 51
S_TYPB = 52; S_NP = 53; S_Z = 54; S_TAG = 55; S_SCL = 56; S_INV = 57; S_L0 = 58; S_L1 = 59
S_LDT = 60
S_DSK = 62
S_SRD = 64
S_F = 68; S_UW = 69
S_PC = 70
S_H = 72; S_OFF = 73; S_ZI = 74; S_SPIN = 75; S_LIGHT = 100; S_GOK = 101
S_ST = 76
SPIN = 1 << 18

e = Emitter()
def stamp(k):
    if STAMP:
        e(f's_memrealtime {sr(S_ST+2*k,2)}')
        e.wait(lg=0)
def spin():
    e(f's_sub_u32 s{S_SPIN}, s{S_SPIN}, 1')
    e(f's_cbranch_scc1 L_end')

V_Z = 10
V_C = 16
V_B = 22
V_Q0 = 28
V_FS = 31
V_K = 34
V_W = 36
V_RA1, V_RA2, V_RAQ = 40, 41, 42
V_KW1, V_KW3, V_KWS = 43, 44, 45
V_UA = 46; V_L16 = 47; V_ZA = 48; V_ZF = 49; V_DUM = 50
V_DT = 52
V_ACC = 60
V_QF = 72
V_TF = 88
V_P = 136
V_GX = 72
V_UL = 196
V_GV = 212
V_BADDR, V_AADDR, V_KADDR, V_L16C = 244, 245, 246, 247
V_BAND = 248

def uload(b):
    if b: e(f'v_add_u32 v{V_UA}, {512*1280}, v{V_UA}')
    e(f'global_load_dwordx2 {v(V_UL+4*b,2)}, v{V_UA}, {sr(P_U,2)}')
    e(f'global_load_dwordx2 {v(V_UL+4*b+2,2)}, v{V_UA}, {sr(P_U,2)} offset:1280')
def sweep():
    e(f'v_add_u32 v9, 4096, v{V_L16}')
    for h in range(8): e(f'global_load_dwordx4 {v(V_GV+4*h,4)}, v{V_L16 if h < 4 else 9}, {sr(P_WS,2)} offset:{1024*(h&3)} sc1')

def build():
    e.raw(f'{NAME}:')
    e(f's_load_dwordx16 s[4:19], s[0:1], 0')
    e(f's_load_dwordx16 s[20:35], s[0:1], 64')
    e(f's_load_dwordx8 s[36:43], s[0:1], 128')
    if STAMP:
        e(f's_memrealtime {sr(S_ST,2)}')
        e(f's_memtime {sr(S_ST+18,2)}')
    e(f's_cmp_ge_u32 s2, 256')
    e(f's_cbranch_scc1 L_end')
    e(f's_getpc_b64 {sr(S_PC,2)}')
    e.raw('L_pc:')
    e(f's_lshr_b32 s{S_IDX}, s2, 3')
    e(f'v_lshl_add_u32 v1, s{S_IDX}, 9, v0')
    e(f'v_min_u32 v1, L_codeend-L_pc-4, v1')
    e(f'global_load_ubyte v{V_DUM}, v1, {sr(S_PC,2)}')
    e(f'v_lshrrev_b32 v1, 6, v0')
    e(f'v_and_b32 v0, 63, v0')
    e(f'v_readfirstlane_b32 s{S_W}, v1')
    e(f's_and_b32 s{S_XCD}, s2, 7')
    e(f's_sub_u32 s{S_Q}, s{S_IDX}, 4')
    e(f's_cbranch_scc1 L_light')
    e(f's_mov_b32 m0, {L_FL-65280}')
    e(f'v_mov_b32 v{V_Z}, 0')
    e(f'ds_write_addtid_b32 v{V_Z} offset:65280')
    e(f's_mul_i32 s{S_T0}, s{S_Q}, 187')
    e(f's_lshr_b32 s{S_T0}, s{S_T0}, 11')
    e(f's_mul_i32 s{S_T1}, s{S_Q}, 3')
    e(f's_sub_u32 s{S_T1}, s{S_T1}, s{S_T0}')
    e(f's_lshl_b32 s{S_T0}, s{S_T0}, 5')
    e(f's_add_u32 s{S_T0}, s{S_T0}, 29')
    e(f's_min_u32 s{S_T1}, s{S_T1}, s{S_T0}')
    e(f's_min_u32 s{S_T1}, s{S_T1}, 77')
    e(f's_sub_u32 s{S_T0}, 77, s{S_T1}')
    e(f's_bitcmp1_b32 s{S_XCD}, 0')
    e(f's_cselect_b32 s{S_T1}, s{S_T0}, s{S_T1}')
    e(f's_mul_i32 s{S_D0}, s{S_XCD}, 80')
    e(f's_add_u32 s{S_D0}, s{S_D0}, s{S_T1}')
    e(f's_lshl_b32 s{S_T0}, s{S_W}, 2')
    e(f's_lshr_b32 s{S_L0}, 0x56302630, s{S_T0}')
    e(f's_and_b32 s{S_L0}, s{S_L0}, 15')
    e(f's_lshr_b32 s{S_L1}, 0x87418741, s{S_T0}')
    e(f's_and_b32 s{S_L1}, s{S_L1}, 15')
    e(f's_mul_i32 s{S_T1}, s{S_D0}, 384')
    e(f'v_lshl_add_u32 v3, v0, 1, s{S_T1}')
    e(f'v_lshl_add_u32 v1, s{S_L0}, 7, v3')
    e(f'v_lshl_add_u32 v2, s{S_L1}, 7, v3')
    e(f'v_mov_b32 v{V_Z+1}, 0')
    for r in range(V_Z+2, V_B+6, 2): e(f'v_pk_mov_b32 {v(r,2)}, {v(V_Z,2)}, {v(V_Z,2)}')
    e(f's_and_b32 s{S_T0}, s{S_W}, 6')
    e(f's_cmp_eq_u32 s{S_T0}, 4')
    e(f's_cselect_b32 s{S_F}, 1, 0')
    e(f's_bitcmp1_b32 0xD2, s{S_W}')
    e.wait(lg=0)
    e(f's_barrier')
    e(f's_cselect_b64 {sr(P_CRE,2)}, {sr(P_2CRE,2)}, {sr(P_CRE,2)}')
    e(f's_cselect_b64 {sr(P_CIM,2)}, {sr(P_2CIM,2)}, {sr(P_CIM,2)}')
    e(f's_cselect_b64 {sr(P_ARE,2)}, {sr(P_2RE,2)}, {sr(P_ARE,2)}')
    e(f's_cselect_b64 {sr(P_AIM,2)}, {sr(P_2IM,2)}, {sr(P_AIM,2)}')
    LD = 'global_load_short_d16_hi'
    for p in range(2):
        e(f'{LD} v{V_C+2*p}, v{1+p}, {sr(P_CRE,2)}')
        e(f'{LD} v{V_C+2*p+1}, v{1+p}, {sr(P_CIM,2)}')
        e(f'{LD} v{V_Z+2*p}, v{1+p}, {sr(P_ARE,2)}')
        e(f'{LD} v{V_Z+2*p+1}, v{1+p}, {sr(P_AIM,2)}')
    e(f's_cselect_b64 {sr(P_ALDT,2)}, {sr(P_2LDT,2)}, {sr(P_ALDT,2)}')
    e(f's_cselect_b64 {sr(P_AD,2)}, {sr(P_2D,2)}, {sr(P_AD,2)}')
    e(f's_cselect_b32 s{S_TYPB}, 1, 0')
    e(f's_cbranch_scc1 L_ldB')
    for p in range(2):
        e(f'{LD} v{V_B+2*p}, v{1+p}, {sr(P_BRE,2)}')
        e(f'{LD} v{V_B+2*p+1}, v{1+p}, {sr(P_BIM,2)}')
    e.label('L_ldB')
    e(f's_and_b32 s{S_T0}, s{S_D0}, 0xfffe')
    e(f's_lshl_b32 s{S_T0}, s{S_T0}, 1')
    e(f's_load_dwordx2 {sr(S_LDT,2)}, {sr(P_ALDT,2)}, s{S_T0}')
    e(f's_load_dwordx2 {sr(S_DSK,2)}, {sr(P_AD,2)}, s{S_T0}')
    e(f's_mov_b32 s{S_LIGHT}, 0')
    e(f's_cmp_eq_u32 s{S_F}, 1')
    e(f's_cbranch_scc0 L_common')
    e(f'{LD} v{V_C+4}, v1, {sr(P_CRE,2)} offset:256')
    e(f'{LD} v{V_C+5}, v1, {sr(P_CIM,2)} offset:256')
    e(f'{LD} v{V_Z+4}, v1, {sr(P_ARE,2)} offset:256')
    e(f'{LD} v{V_Z+5}, v1, {sr(P_AIM,2)} offset:256')
    e(f'{LD} v{V_B+4}, v1, {sr(P_BRE,2)} offset:256')
    e(f'{LD} v{V_B+5}, v1, {sr(P_BIM,2)} offset:256')
    if FPRIO: e(f's_setprio {FPRIO}')
    e(f's_branch L_init')
    e.label('L_light')
    e(f's_mov_b32 s{S_LIGHT}, 1')
    e.wait(lg=0)
    e.label('L_common')
    e.reset()
    e(f's_cmp_lt_u32 s{S_W}, 2')
    e(f's_cbranch_scc0 L_nopf')
    e(f's_lshl1_add_u32 s{S_T2}, s{S_IDX}, s{S_W}')
    e(f's_mul_i32 s{S_T2}, s{S_T2}, {32*1280}')
    e(f's_mul_i32 s{S_T1}, s{S_XCD}, 160')
    e(f's_add_u32 s{S_T2}, s{S_T2}, s{S_T1}')
    e(f'v_lshrrev_b32 v5, 1, v0')
    e(f'v_mul_u32_u24 v5, 1280, v5')
    e(f'v_and_b32 v6, 1, v0')
    e(f'v_mul_u32_u24 v6, 156, v6')
    e(f'v_add3_u32 v5, v5, v6, s{S_T2}')
    e(f'global_load_dword v{V_DUM}, v5, {sr(P_U,2)}', nowait=True)
    e.label('L_nopf')
    e.reset()
    e(f's_cmp_eq_u32 s{S_W}, 6')
    e(f's_cbranch_scc0 L_nogld')
    e(f's_load_dword s{S_TAG}, {sr(P_WS,2)}, {WS_EPOCH}')
    e(f's_and_b32 s{S_T3}, s2, 15')
    e(f's_bfe_u32 s{S_T1}, s2, 0x20004')
    e(f's_lshr_b32 s{S_T2}, s2, 6')
    e(f's_lshl3_add_u32 s{S_T1}, s{S_T2}, s{S_T1}')
    e(f's_lshl_b32 s{S_T1}, s{S_T1}, 6')
    e(f's_add_u32 s{S_T3}, s{S_T3}, s{S_T1}')
    e(f'v_lshrrev_b32 v5, 5, v0')
    e(f'v_bfe_u32 v6, v0, 3, 2')
    e(f'v_lshl_add_u32 v5, v5, 4, v6')
    e(f'v_lshl_add_u32 v5, v5, 4, s{S_T3}')
    e(f'v_mul_u32_u24 v5, 1280, v5')
    e(f'v_and_b32 v6, 7, v0')
    e(f'v_lshlrev_b32 v6, 4, v6')
    e(f'v_add_u32 v5, v5, v6')
    for k in range(10):
        e(f'global_load_dwordx4 {v(V_GX+4*k,4)}, v5, {sr(P_U,2)} offset:{128*k}')
        e(f'global_load_dwordx4 {v(V_GX+40+4*k,4)}, v6, {sr(P_GW,2)} offset:{128*k}')
    e(f's_cmp_eq_u32 s{S_LIGHT}, 1')
    e(f's_cbranch_scc1 L_gate')
    e.label('L_nogld')
    e.reset()
    e(f's_cmp_eq_u32 s{S_LIGHT}, 1')
    e(f's_cbranch_scc1 L_end')
    e.label('L_init')
    e.reset()
    stamp(1)
    e(f's_lshr_b32 s{S_T1}, s{S_W}, 2')
    e(f's_lshl_b32 s{S_ZI}, s{S_T1}, 1')
    e(f's_and_b32 s{S_T2}, s{S_W}, 1')
    e(f's_add_u32 s{S_UW}, s{S_ZI}, s{S_T2}')
    e(f's_mul_i32 s{S_T1}, s{S_UW}, {128*1280}')
    e(f's_add_u32 s{S_T1}, s{S_T1}, s{S_T0}')
    e(f'v_mul_u32_u24 v{V_UA}, 2560, v0')
    e(f'v_add_u32 v{V_UA}, s{S_T1}, v{V_UA}')
    e(f's_bitcmp1_b32 s{S_W}, 1')
    e(f's_cbranch_scc0 L_nou0')
    uload(0)
    e.label('L_nou0')
    e.reset()
    e(f's_mul_i32 s{S_T0}, s{S_W}, {TABS}')
    e(f's_mov_b32 m0, s{S_T0}')
    e(f'v_mov_b32 v5, 0x3c00')
    e(f'v_and_b32 v6, 15, v0')
    e(f'v_lshrrev_b32 v7, 4, v0')
    e(f'v_lshlrev_b32 v{V_L16}, 4, v0')
    e(f'ds_write_addtid_b32 v5 offset:{16*RS}')
    e(f'v_lshl_add_u32 v8, v7, 4, s{S_T0}')
    e(f'v_mul_u32_u24 v9, {RS}, v6')
    e(f'v_add_u32 v{V_RAQ}, v8, v9')
    e(f'v_cmp_eq_u32 vcc, 0, v6')
    e(f'v_add_u32 v5, {16*RS}, v8')
    e(f'v_and_b32 v4, 3, v6')
    e(f'v_cndmask_b32 v{V_RA1}, v{V_RAQ}, v5, vcc')
    e(f'v_sub_u32 v5, v4, 1 clamp')
    e(f'v_lshrrev_b32 v9, 2, v6')
    e(f'v_lshl_add_u32 v5, v9, 1, v5')
    e(f'v_mul_u32_u24 v5, {RS}, v5')
    e(f'v_add_u32 v{V_RA2}, v8, v5')
    e(f'v_mov_b32 v{V_K}, 0x3fb8aa3b')
    e(f'v_mov_b32 v{V_K+1}, 0.15915494')
    e(f'v_mov_b32 v{V_ACC}, 0')
    e(f'v_mov_b32 v{V_ACC+1}, 0')
    for r in range(2, 12, 2): e(f'v_pk_mov_b32 {v(V_ACC+r,2)}, {v(V_ACC,2)}, {v(V_ACC,2)}')
    e(f's_mov_b32 s{S_SPIN}, {SPIN}')
    e(f's_add_u32 s{S_NP}, s{S_F}, 2')
    e(f's_mul_i32 s{S_L0}, s{S_L0}, 11')
    e(f's_lshr_b32 s{S_L0}, s{S_L0}, 5')
    e(f's_mul_i32 s{S_L1}, s{S_L1}, 11')
    e(f's_lshr_b32 s{S_L1}, s{S_L1}, 5')
    e(f's_and_b32 s{S_T0}, s{S_W}, 3')
    e(f's_cmp_eq_u32 s{S_T0}, 3')
    e(f's_cselect_b32 s{S_Z}, 1, 0')
    e(f's_cbranch_scc1 L_initconv')
    e(f's_lshl1_add_u32 s{S_T1}, s{S_L0}, s{S_TYPB}')
    e(f's_mul_i32 s{S_T1}, s{S_T1}, {KS}')
    e(f's_add_u32 s{S_T1}, s{S_T1}, {L_KC}')
    e(f'v_add_u32 v5, s{S_T1}, v{V_L16}')
    for k in range(8): e(f'ds_write_b128 v5, {v(V_ACC,4)} offset:{min(1024*k, KS-1024)}')
    e(f'v_lshlrev_b32 v5, 5, v6')
    e(f'v_lshl_add_u32 v5, v7, 3, v5')
    e(f's_add_u32 s{S_T2}, s{S_T1}, {2*(N0-3-256)}')
    e(f'v_sub_u32 v{V_KW1}, s{S_T2}, v5')
    e(f'v_mul_u32_u24 v5, 96, v4')
    e(f'v_lshlrev_b32 v8, 5, v9')
    e(f'v_sub_u32 v5, v5, v8')
    e(f'v_and_b32 v8, 1, v6')
    e(f'v_mul_u32_u24 v8, 176, v8')
    e(f'v_lshlrev_b32 v3, 4, v6')
    e(f'v_sub_u32 v8, v8, v3')
    e(f'v_add_u32 v8, {2*(268-44)+128}, v8')
    e(f'v_cmp_gt_u32 vcc, 8, v6')
    e(f'v_lshlrev_b32 v3, 3, v7')
    e(f's_add_u32 s{S_T2}, s{S_T1}, {FARB+2*44}')
    e(f'v_cndmask_b32 v5, v8, v5, vcc')
    e(f'v_sub_u32 v5, v5, v3')
    e(f'v_add_u32 v{V_KW3}, s{S_T2}, v5')
    e(f'v_mul_u32_u24 v5, {CS+2}, v4')
    e(f'v_lshrrev_b32 v8, 2, v0')
    e(f'v_cmp_lt_u32 vcc, 2, v8')
    e(f's_add_u32 s{S_T2}, s{S_T1}, {2*(N0-512)}')
    e(f'v_add_u32 v5, s{S_T2}, v5')
    e(f'v_cndmask_b32 v3, 0, 32, vcc')
    e(f'v_add_lshl_u32 v8, v8, v3, 1')
    e(f'v_sub_u32 v{V_KWS}, v5, v8')
    e(f's_lshl_b32 s{S_T0}, s{S_W}, 2')
    e(f's_lshr_b32 s{S_ZI}, 0x03000120, s{S_T0}')
    e(f's_and_b32 s{S_ZI}, s{S_ZI}, 15')
    e(f's_cmp_gt_u32 s{S_W}, 2')
    e(f's_cbranch_scc1 L_initdone')
    e.label('L_initconv')
    e(f'v_add_u32 v5, 1, v6')
    e(f'v_and_b32 v5, 3, v5')
    e(f'v_mul_u32_u24 v5, {CS+2}, v5')
    e(f'v_lshlrev_b32 v8, 1, v6')
    e(f'v_sub_u32 v5, v5, v8')
    e(f'v_lshl_add_u32 v{V_BADDR}, v7, 4, v5')
    e(f'v_lshl_add_u32 v{V_KADDR}, v7, 3, v5')
    e(f'v_add_lshl_u32 v{V_AADDR}, v8, v7, 4')
    e(f's_cmp_eq_u32 s{S_Z}, 1')
    e(f's_cselect_b32 s{S_T0}, 7, 127')
    e(f's_cselect_b32 s{S_T1}, {32+12-1}, {32+8-3}')
    e(f's_cselect_b32 s{S_T2}, 31, 511')
    e(f's_cselect_b32 s{S_T3}, {32+8-2}, {32+8-4}')
    e(f'v_lshlrev_b32 v5, 3, v7')
    e(f'v_sub_u32 v5, v6, v5')
    e(f'v_mov_b32 v3, 0x10001')
    e(f'v_mov_b32 v4, 0x3f80')
    for b, (sp, so) in enumerate(((S_T0, S_T1), (S_T2, S_T3))):
        e(f'v_mov_b32 v8, s{sp}')
        e(f'v_mov_b32 v9, 0')
        e(f'v_add_u32 v1, s{so}, v5')
        e(f'v_lshlrev_b64 v[8:9], v1, v[8:9]')
        e(f'v_and_b32 v9, 0xff, v9')
        e(f'v_lshl_or_b32 v9, v9, 15, v9')
        for i in range(4):
            if i: e(f'v_lshrrev_b32 v9, 2, v9')
            e(f'v_and_b32 v8, v3, v9')
            e(f'v_mul_u32_u24 v{V_BAND+4*b+i}, v4, v8')
    e.label('L_initdone')
    e.reset()
    e(f's_mul_i32 s{S_T0}, s{S_ZI}, 3072')
    e(f's_add_u32 s{S_T0}, s{S_T0}, {L_ZP}')
    e(f'v_add_u32 v{V_ZA}, s{S_T0}, v{V_L16}')
    e(f's_lshl_b32 s{S_T0}, s{S_ZI}, 2')
    e(f's_add_u32 s{S_T0}, s{S_T0}, {F_Z}')
    e(f'v_mov_b32 v{V_ZF}, s{S_T0}')
    e(f's_and_b32 s{S_T0}, s{S_D0}, 1')
    e(f's_add_u32 s{S_L0}, s{S_L0}, s{S_T0}')
    e(f's_add_u32 s{S_L1}, s{S_L1}, s{S_T0}')
    e(f's_lshl_b32 s{S_L0}, s{S_L0}, 4')
    e(f's_lshl_b32 s{S_L1}, s{S_L1}, 4')
    e.wait(lg=0)
    e(f's_lshr_b64 {sr(S_T0,2)}, {sr(S_LDT,2)}, s{S_L0}')
    e(f's_lshr_b64 {sr(S_T2,2)}, {sr(S_LDT,2)}, s{S_L1}')
    e(f's_lshr_b64 {sr(S_DSK,2)}, {sr(S_DSK,2)}, s{S_L0}')
    e(f's_lshl_b32 s{S_T0}, s{S_T0}, 16')
    e(f's_lshl_b32 s{S_T2}, s{S_T2}, 16')
    e(f's_lshl_b32 s{S_DSK}, s{S_DSK}, 16')
    e(f'v_mul_f32 v5, s{S_T0}, v{V_K}')
    e(f'v_mul_f32 v6, s{S_T2}, v{V_K}')
    e(f'v_exp_f32 v5, v5')
    e(f'v_exp_f32 v6, v6')
    e(f'v_cvt_pk_bf16_f32 v5, v5, v6')
    e(f'v_lshlrev_b32 v{V_FS}, 16, v5')
    e(f'v_and_b32 v{V_FS+1}, 0xffff0000, v5')
    e(f'v_mul_f32 v{V_DT}, v{V_FS}, v{V_K}')
    e(f'v_mul_f32 v{V_DT+1}, v{V_FS}, v{V_K+1}')
    e(f'v_mul_f32 v{V_DT+2}, v{V_FS+1}, v{V_K}')
    e(f'v_mul_f32 v{V_DT+3}, v{V_FS+1}, v{V_K+1}')
    e(f's_cmp_eq_u32 s{S_W}, 6')
    e(f's_cbranch_scc0 L_kgen')
    e.label('L_gate')
    e.reset()
    e(f's_setprio 3')
    e(f'v_mov_b32 v5, 0')
    e(f'v_mov_b32 v6, 0')
    e(f's_lshr_b32 s{S_T0}, s2, 6')
    e(f's_lshl_b32 s{S_T0}, s{S_T0}, 7')
    e(f's_and_b32 s{S_T1}, s2, 63')
    e(f's_add_u32 s{S_T0}, s{S_T0}, s{S_T1}')
    e(f's_lshl_b32 s{S_T0}, s{S_T0}, 4')
    e(f'v_lshrrev_b32 v8, 5, v0')
    e(f'v_bfe_u32 v9, v0, 4, 1')
    e(f'v_lshl_add_u32 v8, v8, 7, v9')
    e(f'v_lshl_add_u32 v8, v8, 3, s{S_T0}')
    e.wait(lg=0, vm=2)
    e(f's_cmp_eq_u32 s{S_LIGHT}, 1')
    e(f's_cbranch_scc0 L_g2')
    e.wait(vm=0)
    e.label('L_g2')
    for k in range(40):
        e(f'v_dot2_f32_bf16 v{5+(k&1)}, v{V_GX+k}, v{V_GX+40+k}, v{5+(k&1)}')
    e(f's_add_u32 s{S_TAG}, s{S_TAG}, 0x9E3779B9')
    e(f's_mov_b32 s{S_T0}, 0x80008000')
    e(f'v_add_f32 v5, v5, v6')
    for sh in (1, 2, 4):
        e(f'v_add_f32_dpp v5, v5, v5 row_shr:{sh} row_mask:0xf bank_mask:0xf bound_ctrl:0')
    e(f'v_cvt_pk_bf16_f32 v5, v5, v5')
    e(f'v_and_b32 v5, 0xffff0000, v5')
    e(f'v_mul_f32 v5, 0xbfb8aa3b, v5')
    e(f'v_exp_f32 v5, v5')
    e(f'v_add_f32 v5, 1.0, v5')
    e(f'v_rcp_f32 v5, v5')
    e(f'v_mov_b32 v7, s{S_TAG}')
    e(f'v_mov_b32_dpp v6, v5 row_shr:8 row_mask:0xf bank_mask:0xf bound_ctrl:0')
    e(f'v_cvt_pk_bf16_f32 v6, v6, v5')
    e(f's_mov_b32 exec_lo, s{S_T0}')
    e(f's_mov_b32 exec_hi, s{S_T0}')
    e(f'global_store_dwordx2 v8, v[6:7], {sr(P_WS,2)} sc1')
    e(f's_mov_b64 exec, -1')
    e(f's_setprio 0')
    e(f's_cmp_eq_u32 s{S_LIGHT}, 1')
    e(f's_cbranch_scc1 L_end')
    e(f's_branch L_kgenU')
    e.label('L_kgen')
    e.reset()
    e(f's_bitcmp1_b32 s{S_W}, 1')
    e(f's_cbranch_scc1 L_kgenW')
    e.wait(vm=1)
    e(f's_cmp_eq_u32 s{S_F}, 1')
    e(f's_cbranch_scc0 L_kgen2')
    e.wait(vm=0)
    e(f's_branch L_kgen2')
    e.label('L_kgenW')
    e.wait(vm=2)
    e.label('L_kgenU')
    uload(1)
    e.label('L_kgen2')
    e.reset()
    stamp(2)
    e(f's_cmp_eq_u32 s{S_TYPB}, 1')
    e(f's_cbranch_scc1 L_cB')
    for p in range(3):
        c = v(V_C+2*p,2); b = v(V_B+2*p,2)
        e(f'v_pk_mul_f32 {v(V_W,2)}, {c}, {b} op_sel:[0,0] op_sel_hi:[0,1]')
        e(f'v_pk_fma_f32 {c}, {c}, {b}, {v(V_W,2)} op_sel:[1,1,0] op_sel_hi:[1,0,1] neg_lo:[0,1,0]')
    e(f's_branch L_cAB')
    e.label('L_cB')
    for p in range(3): e(f'v_mul_f32 v{V_Z+2*p}, v{V_K}, v{V_Z+2*p}')
    for p in range(3): e(f'v_exp_f32 v{V_Z+2*p}, v{V_Z+2*p}')
    e(f'v_cvt_pk_bf16_f32 v{V_Z+2}, -v{V_Z}, -v{V_Z+2}')
    e(f'v_cvt_pk_bf16_f32 v{V_Z+4}, -v{V_Z+4}, -v{V_Z+4}')
    e(f'v_lshlrev_b32 v{V_Z}, 16, v{V_Z+2}')
    e(f'v_and_b32 v{V_Z+2}, 0xffff0000, v{V_Z+2}')
    e(f'v_lshlrev_b32 v{V_Z+4}, 16, v{V_Z+4}')
    e.label('L_cAB')
    W = v(V_W,2); WT = v(V_W+2,2)
    e(f'v_max3_f32 v5, |v{V_C}|, |v{V_C+1}|, |v{V_C+2}|')
    e(f'v_max3_f32 v6, |v{V_C+3}|, |v{V_C+4}|, |v{V_C+5}|')
    e(f'v_max_f32 v5, v5, v6')
    fill = [f'v_pk_mul_f32 {v(V_Z,2)}, {v(V_Z,2)}, {v(V_DT,2)}',
            f'v_pk_mul_f32 {v(V_Z+2,2)}, {v(V_Z+2,2)}, {v(V_DT+2,2)}',
            f'v_pk_mul_f32 {v(V_Z+4,2)}, {v(V_Z+4,2)}, {v(V_DT,2)}',
            f'v_exp_f32 v{V_W+2}, v{V_Z}',
            f'v_cos_f32 v{V_W}, v{V_Z+1}',
            f'v_sin_f32 v{V_W+1}, v{V_Z+1}']
    for m in ('row_shr:1 row_mask:0xf bank_mask:0xf bound_ctrl:0','row_shr:2 row_mask:0xf bank_mask:0xf bound_ctrl:0',
              'row_shr:4 row_mask:0xf bank_mask:0xf bound_ctrl:0','row_shr:8 row_mask:0xf bank_mask:0xf bound_ctrl:0',
              'row_bcast:15 row_mask:0xa bank_mask:0xf', 'row_bcast:31 row_mask:0xc bank_mask:0xf'):
        e(fill.pop(0))
        e(f'v_max_f32_dpp v5, v5, v5 {m}')
    e(f'v_pk_mul_f32 {W}, {W}, {WT} op_sel:[0,0] op_sel_hi:[1,0]')
    e(f'v_readlane_b32 s{S_SCL}, v5, 63')
    e(f's_lshr_b32 s{S_SCL}, s{S_SCL}, 23')
    e(f's_max_u32 s{S_SCL}, s{S_SCL}, 14')
    e(f's_sub_u32 s{S_T0}, 267, s{S_SCL}')
    e(f's_lshl_b32 s{S_T0}, s{S_T0}, 23')
    e(f's_add_u32 s{S_SCL}, s{S_SCL}, s{S_TYPB}')
    e(f's_sub_u32 s{S_SCL}, s{S_SCL}, 13')
    e(f's_lshl_b32 s{S_SCL}, s{S_SCL}, 23')
    for p in range(3):
        e(f'v_pk_mul_f32 {v(V_C+2*p,2)}, {v(V_C+2*p,2)}, {sr(S_T0,2)} op_sel_hi:[1,0]')
        e(f'v_cvt_pk_f16_f32 v{V_Q0+p}, v{V_C+2*p}, -v{V_C+2*p+1}')
    e(f'v_mul_f32 v{V_FS}, s{S_SCL}, v{V_FS}')
    e(f'v_mul_f32 v{V_FS+1}, s{S_SCL}, v{V_FS+1}')
    e.raw('.p2align 3')
    e.label('L_pass')
    e.reset()
    P = {}
    nxt = [56]
    def reg(x):
        if x not in P:
            P[x] = nxt[0]; nxt[0] += 1
            if nxt[0] == 60: nxt[0] = V_P
        return P[x]
    pend = []
    def flush():
        for t in pend: e(t)
        pend.clear()
    def wr(rg, row): pend.append(f'ds_write_addtid_b32 v{rg} offset:{row*RS}')
    def anchor(x, row=None):
        if x > 1:
            e(f'v_pk_mul_f32 {WT}, {W}, {W} op_sel:[0,0] op_sel_hi:[0,1]')
            e(f'v_pk_fma_f32 {W}, {W}, {W}, {WT} op_sel:[1,1,0] op_sel_hi:[1,0,1] neg_lo:[0,1,0]')
        e(f'v_cvt_pk_f16_f32 v{reg(x)}, v{V_W}, v{V_W+1}')
        if row is not None: wr(reg(x), row)
    def prod(x, a, b, row, conj=False):
        d = reg(x); a = reg(a); b = reg(b)
        if conj:
            e(f'v_pk_mul_f16 v{d}, v{a}, v{b} op_sel:[0,0] op_sel_hi:[0,1] neg_hi:[0,1]')
            e(f'v_pk_fma_f16 v{d}, v{a}, v{b}, v{d} op_sel:[1,1,0] op_sel_hi:[1,0,1]')
        else:
            e(f'v_pk_mul_f16 v{d}, v{a}, v{b} op_sel:[0,0] op_sel_hi:[0,1]')
            e(f'v_pk_fma_f16 v{d}, v{a}, v{b}, v{d} op_sel:[1,1,0] op_sel_hi:[1,0,1] neg_lo:[0,1,0]')
        wr(d, row)
    def rd(dst, addr):
        flush()
        for s_ in range(4): e(f'ds_read_b128 {v(dst+4*s_,4)}, v{addr} offset:{64*s_}')
    def mm1(t, s_):
        a, b = v(V_TF+16*t+4*s_,4), v(V_QF+4*s_,4)
        if t == 2: a, b = b, a
        return f'v_mfma_f32_16x16x32_f16 {v(V_ACC+4*t,4)}, {a}, {b}, {v(V_ACC+4*t,4)}'
    def wait_pair(t):
        prewait(e, [mm1(t, s_) for s_ in range(4)]); e('s_nop 0')
    P['q0'] = V_Q0
    for hb in (1, 2, 4, 8):
        if hb == 8: flush()
        anchor(hb, hb)
        for x in range(hb+1, 2*hb): prod(x, x-hb, hb, x)
    rd(V_TF, V_RA1)
    wr(V_Q0, 0)
    for hb in (1, 2, 4, 8):
        if hb == 8: flush()
        anchor(16*hb)
        for x in range(hb, 2*hb): prod(f'q{x}', f'q{x-hb}', 16*hb, x, conj=True)
    rd(V_QF, V_RAQ)
    anchor(256, 0)
    for x in range(2, 17, 2): prod(256+x, x, 256, x//2)
    rd(V_TF+16, V_RA2)
    anchor(512); anchor(1024)
    wait_pair(0)
    for i, x in enumerate((4,8,12,16,260,264,268,272)):
        prod(512+x, x, 512, i)
        if i & 1: e(mm1(0, i//2))
    flush()
    wait_pair(1)
    for i, x in enumerate((8,16,264,272,520,528,776,784)):
        prod(1024+x, x, 1024, 8+i)
        if i & 1: e(mm1(1, i//2))
    rd(V_TF+32, V_RAQ)
    assert nxt[0] <= V_UL
    e(f's_sub_u32 s{S_NP}, s{S_NP}, 1')
    e(f's_or_b32 s{S_T0}, s{S_NP}, s{S_Z}')
    e(f's_cbranch_scc0 L_last')
    lgsave = list(e.lg)
    e(f'v_exp_f32 v{V_W+2}, v{V_Z+2}')
    e(f'v_cos_f32 v{V_W}, v{V_Z+3}')
    e(f'v_sin_f32 v{V_W+1}, v{V_Z+3}')
    e(f'v_mov_b32 v{V_Q0}, v{V_Q0+1}')
    e(f'v_mov_b32 v{V_Q0+1}, v{V_Q0+2}')
    e(f'v_pk_mov_b32 {v(V_Z+2,2)}, {v(V_Z+4,2)}, {v(V_Z+4,2)} op_sel:[0,1]')
    e(f'v_pk_mul_f32 {W}, {W}, {WT} op_sel:[0,0] op_sel_hi:[1,0]')
    for s_ in range(4): e(mm1(2, s_))
    e(f's_bitcmp1_b32 s{S_W}, 1')
    e(f's_cbranch_scc0 L_pass')
    e(f's_cmp_eq_u32 s{S_NP}, 0')
    e(f's_cbranch_scc1 L_zend')
    e(f's_cmp_eq_u32 s{S_W}, 6')
    e(f's_cbranch_scc0 L_nosw')
    sweep()
    e.label('L_nosw')
    uload(2); uload(3)
    e(f's_cmp_eq_u32 s{S_Z}, 1')
    e(f's_cbranch_scc0 L_pass')
    e.label('L_zend')
    e.reset()
    e(f'v_mov_b32 v7, 1')
    e(f's_nop 3')
    for r in range(12): e(f'v_mul_f32 v{V_TF+r}, v{V_FS}, v{V_ACC+r}')
    for t in range(3): e(f'ds_write_b128 v{V_ZA}, {v(V_TF+4*t,4)} offset:{1024*t}')
    e(f'ds_write_b32 v{V_ZF}, v7')
    e(f's_cmp_eq_u32 s{S_NP}, 0')
    e(f's_cbranch_scc1 L_post')
    e(f'v_add_u32 v{V_ZA}, 3072, v{V_ZA}')
    e(f'v_add_u32 v{V_ZF}, 4, v{V_ZF}')
    e(f'v_mov_b32 v{V_FS}, v{V_FS+1}')
    for r in range(12): e(f'v_mov_b32 v{V_ACC+r}, 0')
    e(f's_branch L_pass')
    e.label('L_last')
    e.reset(); e.lg = lgsave
    stamp(3)
    ZB = V_TF
    e(f's_cmp_eq_u32 s{S_F}, 1')
    e(f's_cbranch_scc1 L_fF')
    e.label('L_zpoll')
    spin()
    e(f'ds_read_b32 v8, v{V_ZF}')
    for t in range(3): e(f'ds_read_b128 {v(ZB+4*t,4)}, v{V_ZA} offset:{1024*t}')
    e.wait(lg=0)
    e(f'v_cmp_eq_u32 vcc, 0, v8')
    e(f's_cbranch_vccnz L_zpoll')
    e(f's_branch L_fW')
    e.label('L_fF')
    e(f'v_mov_b32 v{ZB}, 0')
    e(f'v_mov_b32 v{ZB+1}, 0')
    for r in range(2, 12, 2): e(f'v_pk_mov_b32 {v(ZB+r,2)}, {v(ZB,2)}, {v(ZB,2)}')
    e.label('L_fW')
    e.reset(); e.lg = lgsave
    KT = V_TF+16
    def fin_valu(t):
        a = V_ACC+4*t; k = KT+4*t
        r = [f'v_fma_f32 v{a+i}, v{V_FS}, v{a+i}, v{ZB+4*t+i}' for i in range(4)]
        return r + [f'v_cvt_pk_bf16_f32 v{k}, v{a+3}, v{a+2}', f'v_cvt_pk_bf16_f32 v{k+1}, v{a+1}, v{a}', f'v_cvt_pk_bf16_f32 v{k+2}, v{a+2}, v{a+1}']
    def fin_wr(t):
        k = KT+4*t; ad = V_KW3 if t == 2 else V_KW1; off = 512 if t == 0 else 0
        r = [f'ds_write_b64 v{ad}, {v(k,2)} offset:{off}']
        for s_ in (1, 3):
            o = off + s_*CS + 2*s_
            r += [f'ds_write_b16 v{ad}, v{k} offset:{o}', f'ds_write_b32 v{ad}, v{k+2} offset:{o+2}', f'ds_write_b16_d16_hi v{ad}, v{k+1} offset:{o+6}']
        o = off + 2*CS + 4
        return r + [f'ds_write_b32 v{ad}, v{k} offset:{o}', f'ds_write_b32 v{ad}, v{k+1} offset:{o+4}']
    e(f's_mov_b64 exec, 1')
    e(f'v_add_f32 v{ZB}, s{S_DSK}, v{ZB}')
    e(f's_mov_b64 exec, -1')
    for t in fin_valu(0) + fin_valu(1): e(t)
    e.wait(lg=0)
    w01 = fin_wr(0) + fin_wr(1)
    for s_ in range(4):
        e(mm1(2, s_))
        for t in w01[2*s_:2*s_+2]: e(t)
    for t in w01[8:]: e(t)
    for t in fin_valu(2): e(t)
    e(f'v_readlane_b32 s{S_T0}, v{KT+4}, 63')
    e(f'v_readlane_b32 s{S_T1}, v{KT+8}, 55')
    for t in fin_wr(2): e(t)
    e(f'v_mov_b32 v5, s{S_T1}')
    e(f's_mov_b64 exec, 0xfff')
    e(f'v_mov_b32 v5, s{S_T0}')
    e(f's_mov_b64 exec, 0xfffff')
    e(f'ds_write_b16 v{V_KWS}, v5')
    e(f's_mov_b64 exec, -1')
    e.label('L_post')
    e.reset()
    stamp(4)
    e(f's_setprio 0')
    e(f's_mov_b32 s{S_GOK}, 0')
    e(f's_bitcmp1_b32 s{S_W}, 1')
    e(f's_cbranch_scc0 L_nostage')
    e(f's_cmp_eq_u32 s{S_W}, 6')
    e(f's_cbranch_scc0 L_stage')
    e.wait(vm=4)
    e.label('L_gchk')
    e.reset()
    GV = V_GV
    e(f'v_xor_b32 v5, s{S_TAG}, v{GV+1}')
    for k in range(1, 16):
        e(f'v_xor_b32 v6, s{S_TAG}, v{GV+2*k+1}')
        e(f'v_or_b32 v5, v5, v6')
    e(f'v_cmp_ne_u32 vcc, 0, v5')
    e(f's_cbranch_vccnz L_gbad')
    e(f'v_add_u32 v5, {L_GT}, v{V_L16}')
    for h in range(8):
        g = GV+4*h
        e(f'v_and_b32 v{g+1}, 0xffff0000, v{g}')
        e(f'v_lshlrev_b32 v{g}, 16, v{g}')
        e(f'v_and_b32 v{g+3}, 0xffff0000, v{g+2}')
        e(f'v_lshlrev_b32 v{g+2}, 16, v{g+2}')
    e(f'v_mov_b32 v6, {F_FAR+8}')
    e(f'v_mov_b32 v8, 64')
    e(f'v_mov_b32 v9, 64')
    for h in range(8): e(f'ds_write_b128 v5, {v(GV+4*h,4)} offset:{1024*h}')
    e(f'ds_write_b64 v6, v[8:9]')
    stamp(7)
    e(f's_cmp_eq_u32 s2, 255')
    e(f's_cbranch_scc0 L_gnoep')
    e(f'v_mov_b32 v5, {WS_EPOCH}')
    e(f'v_mov_b32 v6, s{S_TAG}')
    e(f's_mov_b64 exec, 1')
    e(f'global_store_dword v5, v6, {sr(P_WS,2)}')
    e(f's_mov_b64 exec, -1')
    e.label('L_gnoep')
    e(f's_cmp_eq_u32 s{S_GOK}, 2')
    e(f's_cbranch_scc1 L_fin')
    e(f's_mov_b32 s{S_GOK}, 1')
    e(f's_branch L_stage')
    e.label('L_gbad')
    e(f's_cmp_eq_u32 s{S_GOK}, 2')
    e(f's_cbranch_scc0 L_stage')
    e.label('L_gagain')
    spin()
    e(f's_mov_b32 s{S_GOK}, 2')
    sweep()
    e.wait(vm=0)
    e(f's_branch L_gchk')
    e.label('L_stage')
    e.reset()
    e(f's_lshl_b32 s{S_T0}, s{S_UW}, 8')
    e(f's_mov_b32 m0, s{S_T0}')
    e(f's_and_b32 s{S_T2}, s{S_D0}, 1')
    e(f's_mul_i32 s{S_T0}, s{S_T2}, 0x02020202')
    e(f's_add_u32 s{S_T0}, s{S_T0}, 0x05040100')
    e(f's_xor_b32 s{S_T1}, s{S_T0}, 0x02020202')
    e(f's_cmp_eq_u32 s{S_T2}, 0')
    e.wait(vm=0)
    for b in range(4):
        ev = V_UL+4*b; od = ev+2
        e(f'v_perm_b32 v{12+3*b}, v{od}, v{ev}, s{S_T0}')
        e(f'v_perm_b32 v{14+3*b}, v{od+1}, v{ev+1}, s{S_T0}')
    e(f's_cbranch_scc1 L_usel0')
    for b in range(4): e(f'v_perm_b32 v{13+3*b}, v{V_UL+4*b+3}, v{V_UL+4*b+1}, s{S_T1}')
    e(f's_branch L_usel1')
    e.label('L_usel0')
    for b in range(4): e(f'v_perm_b32 v{13+3*b}, v{V_UL+4*b+2}, v{V_UL+4*b}, s{S_T1}')
    e.label('L_usel1')
    for b in range(4):
        for ch in range(3): e(f'ds_write_addtid_b32 v{12+3*b+ch} offset:{L_U+ch*US+512+1024*b}')
    e.label('L_nostage')
    e.reset()
    e(f'v_mov_b32 v{V_L16C}, v{V_L16}')
    e(f's_cmp_lt_u32 s{S_W}, 3')
    e(f's_cbranch_scc1 L_main')
    e(f's_cmp_eq_u32 s{S_Z}, 1')
    e(f's_cbranch_scc1 L_far')
    e.wait(lg=0)
    stamp(5)
    e(f's_barrier')
    stamp(6)
    e(f's_cmp_eq_u32 s{S_F}, 1')
    e(f's_cbranch_scc1 L_store')
    e(f's_cmp_eq_u32 s{S_GOK}, 1')
    e(f's_cbranch_scc1 L_fin')
    e(f's_branch L_gagain')
    e.label('L_store')
    e.reset()
    e(f's_mov_b32 s{S_SRD}, s{P_OUT}')
    e(f's_mov_b32 s{S_SRD+1}, s{P_OUT+1}')
    e(f's_mov_b32 s{S_SRD+2}, 2621440')
    e(f's_mov_b32 s{S_SRD+3}, 0x20000')
    e(f'v_lshrrev_b32 v5, 2, v0')
    e(f'v_and_b32 v6, 3, v0')
    e(f'v_mul_u32_u24 v7, 1280, v5')
    e(f'v_add_u32 v8, s{S_D0}, v6')
    e(f'v_lshl_add_u32 v7, v8, 1, v7')
    e(f's_and_b32 s{S_T0}, s{S_W}, 1')
    e(f's_lshl_b32 s{S_T1}, s{S_T0}, 7')
    e(f's_add_u32 s{S_T1}, s{S_T1}, {L_OS}')
    e(f'v_mul_u32_u24 v9, {OSS}, v6')
    e(f'v_lshl_add_u32 v8, v5, 2, v9')
    e(f'v_add_u32 v8, s{S_T1}, v8')
    e(f'v_add_u32 v10, 64, v8')
    e(f'v_add_u32 v9, {L_OS+4096}, v9')
    e(f's_mul_i32 s{S_OFF}, s{S_T0}, {128*1280}')
    e(f's_mov_b32 s{S_H}, 0')
    e(f's_mov_b32 s{S_T0}, 0x77777777')
    e(f's_mov_b32 exec_lo, s{S_T0}')
    e(f's_mov_b32 exec_hi, s{S_T0}')
    e.label('L_sloop')
    e.reset()
    spin()
    e(f'ds_read_b32 v12, v9')
    e(f'ds_read2st64_b32 v[16:17], v8 offset0:0 offset1:1')
    e(f'ds_read2st64_b32 v[18:19], v10 offset0:0 offset1:1')
    e.wait(lg=0)
    e(f'v_cmp_ge_u32 vcc, s{S_H}, v12')
    e(f's_cbranch_vccnz L_sloop')
    if STAMP:
        e(f's_cmp_eq_u32 s{S_H}, 0'); e(f's_cbranch_scc0 L_st8'); stamp(8); e.label('L_st8')
    for k in range(8):
        op = 'buffer_store_short_d16_hi' if k & 1 else 'buffer_store_short'
        e(f'{op} v{16+k//2}, v7, {sr(S_SRD,4)}, s{S_OFF} offen')
        e(f's_add_u32 s{S_OFF}, s{S_OFF}, {16*1280 if k < 7 else (16+128)*1280}')
    e(f'v_add_u32 v8, 512, v8')
    e(f'v_add_u32 v10, 512, v10')
    e(f's_add_u32 s{S_H}, s{S_H}, 1')
    e(f's_cmp_lt_u32 s{S_H}, 8')
    e(f's_cbranch_scc1 L_sloop')
    e(f's_mov_b64 exec, -1')
    e(f's_branch L_fin')
    gen_far()
    gen_main()
    e.label('L_fin')
    e.reset()
    if STAMP:
        e.wait(vm=0, lg=0)
        stamp(11)
        e(f's_memtime {sr(S_ST+20,2)}')
        e.wait(lg=0)
        e(f's_lshl_b32 s{S_T0}, s2, 3')
        e(f's_add_u32 s{S_T0}, s{S_T0}, s{S_W}')
        e(f's_lshl_b32 s{S_T0}, s{S_T0}, 6')
        e(f's_add_u32 s{S_T0}, s{S_T0}, {WS_STAMP}')
        e(f'v_mov_b32 v5, s{S_T0}')
        for k in range(12): e(f'v_mov_b32 v{8+k}, s{S_ST+2*k}')
        e(f's_getreg_b32 s{S_T1}, hwreg(HW_REG_HW_ID)')
        e(f'v_mov_b32 v20, s{S_T1}')
        e(f's_mov_b64 exec, 1')
        for k in range(3): e(f'global_store_dwordx4 v5, {v(8+4*k,4)}, {sr(P_WS,2)} offset:{16*k}')
        e(f'global_store_dword v5, v20, {sr(P_WS,2)} offset:48')
        e(f's_mov_b64 exec, -1')
    e.label('L_end')
    e(f's_endpgm')
    e.raw('L_codeend:')

MF = 'v_mfma_f32_16x16x32_bf16'
def mfma(d, a, b, c=None):
    cs = '0' if c is None else v(c,4)
    return f'{MF} {v(d,4)}, {v(a,4)}, {v(b,4)}, {cs}'

def gen_far():
    KAP = 0
    WR = 72
    WT = 120
    AF = 152
    ACC = 168
    A0, A1, K0, K2, FP, FL, FV, FP2 = 192, 193, 194, 195, 196, 197, 198, 199
    L16 = V_L16C
    e.label('L_far')
    e.reset()
    e(f's_lshr_b32 s{S_T0}, s{S_W}, 2')
    e(f's_mul_i32 s{S_T1}, s{S_T0}, {US}')
    e(f's_add_u32 s{S_T1}, s{S_T1}, {L_U+512-48}')
    e(f'v_add_u32 v{A0}, s{S_T1}, v{V_AADDR}')
    e(f'v_add_u32 v{A1}, {L_U+2*US+512-48}, v{V_AADDR}')
    e(f's_mul_i32 s{S_T1}, s{S_T0}, {2*KS}')
    e(f's_add_u32 s{S_T1}, s{S_T1}, {L_KC+FARB}')
    e(f'v_add_u32 v{K0}, s{S_T1}, v{V_KADDR}')
    e(f's_mul_i32 s{S_T1}, s{S_T0}, {KS}')
    e(f's_add_u32 s{S_T1}, s{S_T1}, {L_KC+4*KS+FARB}')
    e(f'v_add_u32 v{K2}, s{S_T1}, v{V_KADDR}')
    e(f's_lshl_b32 s{S_T1}, s{S_T0}, 11')
    e(f'v_add_u32 v{FP}, s{S_T1}, v{L16}')
    e(f's_lshl_b32 s{S_T1}, s{S_T0}, 10')
    e(f's_add_u32 s{S_T1}, s{S_T1}, 4096')
    e(f'v_add_u32 v{FP2}, s{S_T1}, v{L16}')
    e(f's_lshl_b32 s{S_T1}, s{S_T0}, 2')
    e(f's_add_u32 s{S_T1}, s{S_T1}, {F_FAR}')
    e(f'v_mov_b32 v{FL}, s{S_T1}')
    e(f'v_mov_b32 v{FV}, 2')
    e(f'v_mov_b32 v5, 0')
    e(f's_lshl_b32 s{S_T1}, s{S_T0}, 8')
    e(f's_mov_b32 m0, s{S_T1}')
    e(f'ds_write_b32 v{FL}, v{FV}')
    for ch in range(3): e(f'ds_write_addtid_b32 v5 offset:{L_U+ch*US}')
    e.wait(lg=0)
    stamp(5)
    e(f's_barrier')
    stamp(6)
    def rdA(i):
        r = []
        for c in range(2):
            r.append(f'ds_read_b128 {v(AF+8*c,4)}, v{A0+c} offset:{512*i+16}')
            r.append(f'ds_read_b128 {v(AF+8*c+4,4)}, v{A0+c} offset:{512*i}')
        return r
    def rdK(dl):
        r = []
        for p in range(2):
            for u in range(3):
                ad, uo = (K0, u*KS) if u < 2 else (K2, 0)
                for g in (2*p, 2*p+1):
                    rr = KAP + ((u*3+dl)*2 + g//2)*4 + (g&1)*2
                    r.append(f'ds_read_b64 {v(rr,2)}, v{ad} offset:{uo + 2*(GPOS[g]-16*dl)}')
        return r
    S = Sched(e)
    def win(i):
        k0 = len(S.mf)
        for p in range(2):
            for c in range(2):
                for g in (2*p, 2*p+1):
                    S.add_mfma(mfma(WT+16*c+4*g, AF+8*c+4*(g//2), V_BAND+4*(g&1)))
        return k0
    def cvts(i):
        r = []
        for p in range(2):
            for c in range(2):
                for g in (2*p, 2*p+1):
                    t = WT+16*c+4*g; rr = WR + ((c*3+i%3)*2+g//2)*4 + (g&1)*2
                    r.append(f'v_cvt_pk_bf16_f32 v{rr}, v{t}, v{t+1}')
                    r.append(f'v_cvt_pk_bf16_f32 v{rr+1}, v{t+2}, v{t+3}')
        return r
    def mm(i, dl):
        par = i & 1
        for p in range(2):
            for u in range(3):
                c = 0 if u < 2 else 1
                first = (dl == min(2, i) and p == 0)
                acc = ACC+12*par+4*u
                S.add_mfma(mfma(acc, KAP+((u*3+dl)*2+p)*4, WR+((c*3+(i-dl)%3)*2+p)*4, None if first else acc))
    def outs(i):
        par = i & 1; r = []
        for u in range(3):
            ad, o = (FP, u*1024) if u < 2 else (FP2, 0)
            r.append(f'ds_write_b128 v{ad}, {v(ACC+12*par+4*u,4)} offset:{L_FP + i*6144 + o}')
        return r
    for t in rdA(0) + rdK(0)[:8]: e(t)
    k = win(0)
    S.chain(rdK(0)[8:], k)
    S.chain(rdA(1), k+7, cap=4)
    S.emit(); S = Sched(e)
    for t in cvts(0): e(t)
    for i in range(6):
        k0 = len(S.mf)
        if i < 5: win(i+1)
        kw = len(S.mf)
        if i >= 2: mm(i, 2)
        k2 = len(S.mf)
        if i >= 1: mm(i, 1)
        mm(i, 0)
        if i:
            S.put(f'v_mov_b32 v{FV}, {i+2}', k0)
            k = S.chain(outs(i-1), k0+3, cap=1)
            S.put(f'ds_write_b32 v{FL}, v{FV}', k+1, cap=1)
        if i < 2: S.chain(rdK(i+1), k0)
        if i < 4: S.chain(rdA(i+2), kw-1, cap=2)
        if i < 5:
            cv = cvts(i+1); k = k2 if i >= 2 else 0
            for q in range(8): k = S.chain(cv[2*q:2*q+2], max(k, k0+q+4), cap=(4 if i == 0 else 2))
            assert k < len(S.mf), (i, k, len(S.mf))
    S.emit()
    e(f'v_mov_b32 v{FV}, 8')
    for t in outs(5): e(t)
    e(f'ds_write_b32 v{FL}, v{FV}')
    e(f's_branch L_fin')

def gen_main():
    BA, BB = 0, 68
    AR = 136; A16 = 168; ACC = 172; PART = 188; GATE = 196; W3 = 200
    X = 216
    WT, AW = X, X+8
    K3, AC = X, X+16
    FPA, GTA, FLA, FLAG, O0, O1, FV = 236, 237, 238, 239, 240, 241, 242
    CB = V_BAND
    BAD, AAD, KAD, L16 = V_BADDR, V_AADDR, V_KADDR, V_L16C
    e.label('L_main')
    e.reset()
    e(f's_mul_i32 s{S_T0}, s{S_W}, {2*KS}')
    e(f's_add_u32 s{S_T1}, s{S_T0}, {L_KC + 2*(N0-16-32*17)}')
    e(f'v_add_u32 v{BAD}, s{S_T1}, v{BAD}')
    e(f's_add_u32 s{S_T1}, s{S_T0}, {L_KC + FARB}')
    e(f'v_add_u32 v{KAD}, s{S_T1}, v{KAD}')
    e(f's_mul_i32 s{S_T1}, s{S_W}, {US}')
    e(f's_add_u32 s{S_T1}, s{S_T1}, {L_U}')
    e(f'v_add_u32 v{AAD}, s{S_T1}, v{AAD}')
    e(f's_lshl_b32 s{S_T1}, s{S_W}, 11')
    e(f'v_add_u32 v{FPA}, s{S_T1}, v{L16}')
    e(f'v_add_u32 v{GTA}, {L_GT}, v{L16}')
    e(f'v_and_b32 v{FLA}, 3, v0')
    e(f'v_lshlrev_b32 v{FLA}, 2, v{FLA}')
    e(f'v_add_u32 v{FLA}, {F_FAR}, v{FLA}')
    e(f's_mul_i32 s{S_T1}, s{S_W}, {OSS}')
    e(f's_add_u32 s{S_T1}, s{S_T1}, {OSM}')
    e(f's_mov_b32 m0, s{S_T1}')
    e(f'v_mov_b32 v{FV}, 0')
    e(f'ds_write_addtid_b32 v{FV} offset:{L_OS-OSM+4096}')
    e(f's_setprio 2')
    e.wait(lg=0)
    stamp(5)
    e(f's_barrier')
    stamp(6)
    def rdB(j, s_, dst=None):
        r = dst if dst is not None else (BB if s_ else BA)+4*j
        o = s_*KS + 64*(17-j)
        return [f'ds_read_b64 {v(r,2)}, v{BAD} offset:{o}', f'ds_read_b64 {v(r+2,2)}, v{BAD} offset:{o+8}']
    def rdA(dst, m, off=-16):
        return f'ds_read_b128 {v(dst,4)}, v{AAD} offset:{512 + 2*(32*m+off)}'
    def rdK3(dst, dl, s_):
        return [f'ds_read_b64 {v(dst+2*a,2)}, v{KAD} offset:{s_*KS + 2*(GPOS[4+a]-16*dl)}' for a in range(2)]
    def ep_reads(h):
        r = [f'ds_read_b32 v{FLAG}, v{FLA}', f'ds_read_b128 {v(GATE,4)}, v{GTA} offset:{1024*h}']
        if h >= 2:
            r += [f'ds_read_b128 {v(PART,4)}, v{FPA} offset:{L_FP+(h-2)*6144}',
                  f'ds_read_b128 {v(PART+4,4)}, v{FPA} offset:{L_FP+(h-2)*6144+1024}']
        return r
    def ep_check(h): return [f'v_cmp_ge_u32 vcc, {h}, v{FLAG}', f'@{h}']
    def ep_math(h):
        a = ACC+8*(h&1); b = a+4; r = []
        if h >= 2: r += [f'v_add_f32 v{a+i}, v{a+i}, v{PART+i}' for i in range(8)]
        r += [f'v_sub_f32 v{a+i}, v{a+i}, v{b+i}' for i in range(4)]
        r += [f'v_fma_f32 v{a+i}, v{GATE+i}, v{a+i}, v{b+i}' for i in range(4)]
        r += [f'v_cvt_pk_bf16_f32 v{O0}, v{a}, v{a+1}', f'v_cvt_pk_bf16_f32 v{O1}, v{a+2}, v{a+3}', f'v_mov_b32 v{FV}, {h+1}',
              f'ds_write_addtid_b32 v{O0} offset:{L_OS-OSM+512*h}',
              f'ds_write_addtid_b32 v{O1} offset:{L_OS-OSM+512*h+256}',
              f'ds_write_addtid_b32 v{FV} offset:{L_OS-OSM+4096}']
        return r
    retries = []
    def special(t):
        h = int(t[1:])
        e(f's_cbranch_vccnz L_retry{h}')
        e.raw(f'L_back{h}:')
        retries.append(h)
    S = Sched(e)
    for j in range(3):
        e(rdA(AR+4*j, -j))
        for t in rdB(j, 0) + rdB(j, 1): e(t)
    ends = {}
    for h in range(8):
        a = ACC+8*(h&1); b = a+4
        first = [True]
        def two(A, Ba, Bb, swap=False):
            c0, c1 = (None, None) if first[0] else (a, b)
            first[0] = False
            k = S.add_mfma(mfma(a, Ba, A, c0) if swap else mfma(a, A, Ba, c0))
            S.add_mfma(mfma(b, Bb, A, c1) if swap else mfma(b, A, Bb, c1))
            return k
        k0 = len(S.mf)
        if h == 0:
            for j in range(8):
                k = two(AR+4*j, BA+4*j, BB+4*j)
                jj = j+3
                its = ([rdA(AR+4*jj, -jj)] if jj < 8 else []) + rdB(jj, 0) + rdB(jj, 1)
                S.vec[k] = its[:len(its)-2]; S.vec[k+1] = its[len(its)-2:]
            S.vec[11] += ep_reads(0)
            S.vec[15].append(rdA(AW, 0, -24))
            continue
        i = h-1
        ring = []
        for j in range(8):
            if j == 1 and i < 4:
                kwin = S.add_mfma(mfma(WT, AR, V_BAND)); S.add_mfma(mfma(WT+4, AW, V_BAND+4))
                ring[0] = kwin
            k = two(AR+4*j, BA+4*(j+8), BB+4*(j+8))
            ring.append(k+1)
        for j in range(8):
            S.vec.setdefault(ring[j], []).insert(0, rdA(AR+4*j, 8*h-j))
            if h == 1 and j+11 <= 16:
                for t in reversed(rdB(j+11, 0) + rdB(j+11, 1)): S.vec.setdefault(ring[j]-1, []).insert(0, t)
        kk = k0
        if h > 1: kk = S.chain(ep_reads(h-1), k0-3) + 5
        kk = S.chain(ep_check(h-1), max(kk, k0+1), cap=(5 if h == 1 else 2))
        kk = S.chain(ep_math(h-1), max(kk, k0+3), cap=(5 if h == 1 else 2))
        if h >= 2:
            two(A16, BA+64, BB+64)
        base = len(S.mf)
        for j in range(8): two(AR+4*j, BA+4*j, BB+4*j)
        if 1 <= h < 7: S.put(rdA(A16, 8*(h-1)), base)
        if i < 4:
            cv = [f'v_cvt_pk_bf16_f32 v{W3+4*i+q}, v{WT+2*q}, v{WT+2*q+1}' for q in range(4)]
            kc = S.chain(cv, kwin+5)
            if i < 3: S.put(rdA(AW, 8*(i+1), -24), base)
        if h >= 4:
            its = [rdA(AC, 8*(h-4))]
            if h == 4: its += rdB(17, 0, CB) + rdB(17, 1, CB+4)
            its += rdK3(K3, 0, 0) + rdK3(K3+4, 0, 1)
            if h >= 5: its += rdK3(K3+8, 1, 0) + rdK3(K3+12, 1, 1)
            st = base+1
            if h == 4: st = max(st, kc+1)
            S.chain(its, st)
            tail = S.mf[-8:]; del S.mf[-8:]
            for dl in range(min(2, h-3)):
                kq = K3+8*dl
                k = two(W3+4*(h-4-dl), kq, kq+4, swap=True)
                if dl+2 < h-3: S.chain(rdK3(kq, dl+2, 0) + rdK3(kq+4, dl+2, 1), k+1)
            S.mf += tail
            two(AC, CB, CB+4)
            for dl in range(2, h-3):
                kq = K3+8*(dl&1)
                two(W3+4*(h-4-dl), kq, kq+4, swap=True)
    S.chain(ep_reads(7), len(S.mf)-6)
    over = {k: len(x) for k, x in S.vec.items() if len(x) > 2}
    print('main: mfma', len(S.mf), 'fillers', sum(len(x) for x in S.vec.values()), 'overfull slots', over)
    S.emit(special)
    for t in ep_check(7) + ep_math(7):
        if t.startswith('@'): special(t)
        else: e(t)
    e(f's_branch L_fin')
    for h in retries:
        e.label(f'L_retry{h}')
        e.reset()
        spin()
        for t in ep_reads(h): e(t)
        e.wait(lg=0)
        e(ep_check(h)[0])
        e(f's_cbranch_vccnz L_retry{h}')
        e(f's_branch L_back{h}')

build()
hdr = open('gated_mix__ssm_conv_s4__ssm_conv_s4d__prompt.s.ref').read()
head = hdr[:hdr.index('; @launch')]
out = head + f'; @launch grid=(256,1,1) block=(512,1,1) lds={LDS_BYTES}\n'
out += f'''.amdgcn_target "amdgcn-amd-amdhsa--gfx950"
.text
.globl {NAME}
.p2align 8
.type {NAME},@function
'''
out += e.text()
out += f'''.section .rodata,"a"
.p2align 6
.amdhsa_kernel {NAME}
  .amdhsa_next_free_vgpr 256
  .amdhsa_next_free_sgpr 102
  .amdhsa_accum_offset 256
  .amdhsa_group_segment_fixed_size 0
  .amdhsa_kernarg_size 160
  .amdhsa_user_sgpr_count 2
  .amdhsa_user_sgpr_kernarg_segment_ptr 1
  .amdhsa_system_sgpr_workgroup_id_x 1
.end_amdhsa_kernel
'''
dst = sys.argv[1] if len(sys.argv) > 1 else 'gated_mix__ssm_conv_s4__ssm_conv_s4d__prompt.s'
open(dst, 'w').write(out)
print('wrote', dst, e.count, 'instructions')
```
